```python
import torch

def _softmax(x, axis=-1):
    return torch.softmax(x, dim=axis)
def _gelu(x):
    return torch.nn.functional.gelu(x, approximate="tanh")
def _silu(x):
    return torch.nn.functional.silu(x)
def _sigmoid(x):
    return torch.sigmoid(x)
def _layernorm(x, axis=-1, eps=1e-5):
    m = x.mean(dim=axis, keepdim=True)
    v = x.var(dim=axis, keepdim=True, unbiased=False)
    return (x - m) / torch.sqrt(v + eps)
def _scatter_add(tgt, idx, src, axis=0):
    return tgt.clone().index_add_(axis, idx, src)
def _segment_sum(src, seg, n):
    out = torch.zeros((n,) + src.shape[1:], dtype=src.dtype)
    return out.index_add_(0, seg, src)
def _pad(x, pw):
    flat = tuple(v for pair in reversed(pw) for v in pair)
    return torch.nn.functional.pad(x, flat)

kernel_name = 'recurrent_scan__compressed_kv_cla__glu_gated_bilinear__prompt'

def setup_inputs():

    _w = (lambda a: (lambda t: t.to(torch.bfloat16) if t.is_floating_point() else t)(torch.as_tensor(a)))
    def _A_setup():
        B, H, Sq, Sk, D, M = 1, 32, 2048, 2048, 128, 640
        Dc = 4 * D
        return {
            "x": _w((lambda *s: torch.randn(*s, dtype=torch.bfloat16) * 0.05)(B, Sq, M)),
            "c_kv": _w((lambda *s: torch.randn(*s, dtype=torch.bfloat16) * 1.6)(B, Sk, Dc)),
            "w_q": _w((lambda *s: torch.randn(*s, dtype=torch.bfloat16) * 1.6)(M, H, D) * (M ** -0.5)),
            "w_uk": _w((lambda *s: torch.randn(*s, dtype=torch.bfloat16) * 1.6)(Dc, H, D) * (Dc ** -0.5)),
            "w_uv": _w((lambda *s: torch.randn(*s, dtype=torch.bfloat16) * 1.6)(Dc, H, D) * (Dc ** -0.5)),
            "w_o": _w((lambda *s: torch.randn(*s, dtype=torch.bfloat16) * 1.6)(H, D, M) * ((H * D) ** -0.5)),
        }
    _A_in = _A_setup()

    def _B_setup():
        B, S, D, F = 1, 2048, 640, 1728
        return {
            "x": _w((lambda *s: torch.randn(*s, dtype=torch.bfloat16) * 0.05)(B, S, D)),
            "w_gate": _w((lambda *s: torch.randn(*s, dtype=torch.bfloat16) * 0.2)(D, F) * (D ** -0.5)),
            "w_up": _w((lambda *s: torch.randn(*s, dtype=torch.bfloat16) * 0.2)(D, F) * (D ** -0.5)),
            "w_down": _w((lambda *s: torch.randn(*s, dtype=torch.bfloat16) * 0.2)(F, D) * (F ** -0.5)),
        }
    _B_in = _B_setup()

    return {
        "A_x": _A_in["x"],
        "A_c_kv": _A_in["c_kv"],
        "A_w_q": _A_in["w_q"],
        "A_w_uk": _A_in["w_uk"],
        "A_w_uv": _A_in["w_uv"],
        "A_w_o": _A_in["w_o"],
        "B_x": _B_in["x"],
        "B_w_gate": _B_in["w_gate"],
        "B_w_up": _B_in["w_up"],
        "B_w_down": _B_in["w_down"],
    }

def reference(A_x, A_c_kv, A_w_q, A_w_uk, A_w_uv, A_w_o, B_x, B_w_gate, B_w_up, B_w_down):
    def _A_ref(x, c_kv, w_q, w_uk, w_uv, w_o):
        B, Sq, M = x.shape[0], x.shape[1], x.shape[2]
        Sk = c_kv.shape[1]
        H, D = w_q.shape[1], w_q.shape[2]
        q = torch.einsum("bqm,mhd->bhqd", x, w_q)
        k = torch.einsum("bkc,chd->bhkd", c_kv, w_uk)
        v = torch.einsum("bkc,chd->bhkd", c_kv, w_uv)
        scores = torch.einsum("bhqd,bhkd->bhqk", q, k) * (D ** -0.5)
        off = Sk - Sq
        qi = torch.arange(Sq)[:, None]
        kj = torch.arange(Sk)[None, :]
        cmask = kj <= (qi + off)
        scores = torch.where(cmask[None, None], scores, -1e9)
        p = _softmax(scores, axis=-1)
        ctx = torch.einsum("bhqk,bhkd->bhqd", p, v)
        return torch.einsum("bhqd,hdm->bqm", ctx, w_o)

    def _B_ref(x, w_gate, w_up, w_down):
        g = torch.einsum("bsd,df->bsf", x, w_gate)
        u = torch.einsum("bsd,df->bsf", x, w_up)
        h = g * u
        return torch.einsum("bsf,fd->bsd", h, w_down)

    x = A_x
    xn = _layernorm(x, axis=-1)
    s = _A_ref(xn, A_c_kv, A_w_q, A_w_uk, A_w_uv, A_w_o)
    g = _silu(_B_ref(xn, B_w_gate, B_w_up, B_w_down))
    return x + s * g
```

```python
import re

_REG = re.compile(r"\b([vas])(?:\[(\d+):(\d+)\]|(\d+)\b)")

def regs_of(opnd):
    out = []
    for m in _REG.finditer(opnd):
        f = m.group(1)
        if m.group(2) is not None:
            out += [(f, i) for i in range(int(m.group(2)), int(m.group(3)) + 1)]
        else:
            out.append((f, int(m.group(4))))
    o = opnd.strip()
    if re.search(r"\bvcc\b", o): out += [("vcc", 0)]
    if re.search(r"\bm0\b", o): out += [("m0", 0)]
    if re.search(r"\bexec\b", o): out += [("exec", 0)]
    return out

TRANS = ("v_exp_f32", "v_log_f32", "v_rcp_f32", "v_rsq_f32", "v_sqrt_f32", "v_sin_f32", "v_cos_f32")

class I:
    __slots__ = ("text", "op", "kind", "rd", "wr", "tag", "srcc", "srcab", "wide", "cost")
    def __init__(self, text, tag=None):
        self.text = text.strip()
        self.tag = tag
        t = self.text.split(";")[0].strip()
        self.srcc = []; self.srcab = []; self.wide = False
        if t.endswith(":"):
            self.op = "label"; self.kind = "label"; self.rd = []; self.wr = []; return
        parts = t.split(None, 1)
        op = parts[0]; self.op = op
        rest = parts[1] if len(parts) > 1 else ""
        ops = [x.strip() for x in re.split(r",(?![^\[]*\])", rest)] if rest else []
        rd, wr = [], []
        if op.startswith("v_mfma"):
            self.kind = "mfma"
            wr = regs_of(ops[0]); self.srcab = regs_of(ops[1]) + regs_of(ops[2]); self.srcc = regs_of(ops[3])
            rd = self.srcab + self.srcc
        elif op.startswith("ds_read") or op.startswith("ds_bpermute") or op.startswith("ds_swizzle"):
            self.kind = "ds_read"; wr = regs_of(ops[0]); rd = sum((regs_of(o.split()[0]) for o in ops[1:]), [])
        elif op.startswith("ds_write"):
            self.kind = "ds_write"; rd = sum((regs_of(o.split()[0]) for o in ops), [])
        elif op.startswith("buffer_load") or op.startswith("global_load"):
            if re.search(r"\blds\b", t) or "_lds_" in op:
                self.kind = "dma"; rd = sum((regs_of(o.split()[0]) for o in ops), []) + [("m0", 0)]
            else:
                self.kind = "vload"; wr = regs_of(ops[0]); rd = sum((regs_of(o.split()[0]) for o in ops[1:]), [])
        elif op.startswith("buffer_store") or op.startswith("global_store") or op.startswith("buffer_atomic") or op.startswith("global_atomic"):
            self.kind = "vstore"; rd = sum((regs_of(o.split()[0]) for o in ops), [])
            self.wide = "x4" in op or "x3" in op
        elif op.startswith("s_load") or op.startswith("s_memtime") or op.startswith("s_memrealtime") or op.startswith("s_buffer_load"):
            self.kind = "smem"; wr = regs_of(ops[0]); rd = sum((regs_of(o) for o in ops[1:]), [])
        elif op in ("s_waitcnt",):
            self.kind = "wait"
        elif op == "s_barrier":
            self.kind = "barrier"
        elif op == "s_nop":
            self.kind = "nop"
        elif op.startswith("s_cbranch") or op in ("s_branch", "s_endpgm", "s_setpc_b64", "s_call_b64", "s_swappc_b64"):
            self.kind = "branch"
            if "vcc" in op: rd = [("vcc", 0)]
            if op == "s_call_b64": wr = regs_of(ops[0])
            if op == "s_setpc_b64": rd = regs_of(ops[0])
        elif op.startswith("s_cmp") or op.startswith("s_bitcmp") or op == "s_setprio" or op == "s_sleep":
            self.kind = "salu"; rd = sum((regs_of(o) for o in ops), [])
        elif op.startswith("s_"):
            self.kind = "salu"; wr = regs_of(ops[0]); rd = sum((regs_of(o) for o in ops[1:]), [])
            if "saveexec" in op: wr += [("exec", 0)]
        elif op.startswith("v_"):
            self.kind = "trans" if op.replace("_e32", "").replace("_e64", "") in TRANS else "valu"
            wr = regs_of(ops[0]); rd = sum((regs_of(o.split(" row_")[0].split(" quad_perm")[0]) for o in ops[1:]), [])
            if op.startswith("v_fmac") or op.startswith("v_dot2c") or op.startswith("v_pk_fmac"): rd += wr
            if op.startswith("v_permlane") and "swap" in op:
                wr = regs_of(ops[0]) + regs_of(ops[1]); rd = list(wr)
            if op.startswith("v_add_co") or op.startswith("v_addc_co") or op.startswith("v_sub_co"):
                wr = regs_of(ops[0]) + regs_of(ops[1]); rd = sum((regs_of(o) for o in ops[2:]), [])
            if "_dpp" in op or " row_" in t or "quad_perm" in t:
                rd += wr
        elif op.startswith("."):
            self.kind = "directive"
        elif op == "@waitvm":
            self.kind = "waitvm"
        else:
            raise ValueError("unknown instr: " + text)
        self.rd = rd; self.wr = wr

    def is_valu(self): return self.kind in ("valu", "trans")
    def states(self):
        if self.kind == "nop": return int(self.text.split()[1], 0) + 1
        if self.kind in ("label", "directive", "waitvm"): return 0
        return 1

def mfma_passes(i):
    return 8 if "32x32x16" in i.op else 4

def hazard_need(p, c):
    need = 0
    pw = set(p.wr)
    if p.is_valu():
        vw = {r for r in pw if r[0] in "va"}
        sw = {r for r in pw if r[0] in ("s", "vcc")}
        if c.kind == "mfma" and vw & set(c.rd): need = max(need, 2)
        if p.kind == "trans" and c.kind == "valu" and vw & set(c.rd): need = max(need, 1)
        if p.kind == "trans" and c.kind in ("ds_write", "vstore") and vw & set(c.rd): need = max(need, 1)
        if c.is_valu():
            if sw & set(c.rd):
                need = max(need, 4 if c.op.startswith("v_readlane") or c.op.startswith("v_writelane") else 2)
            if vw & set(c.rd):
                if c.op.startswith("v_readlane") or c.op.startswith("v_readfirstlane"): need = max(need, 1)
                if c.op.startswith("v_permlane"): need = max(need, 2)
                if "_dpp" in c.op or " row_" in c.text or "quad_perm" in c.text: need = max(need, 2)
        if c.kind in ("dma", "vload", "vstore") and sw & set(c.rd): need = max(need, 5)
        if c.kind in ("salu", "smem") and sw & set(c.rd): need = max(need, 1)
    if p.kind == "mfma":
        ps = mfma_passes(p)
        if c.kind == "mfma":
            if pw & set(c.srcab): need = max(need, 8 if ps == 4 else 12)
            if pw & set(c.srcc):
                if not (c.srcc == p.wr and mfma_passes(c) == ps): need = max(need, 6 if ps == 4 else 10)
            elif pw & set(c.wr):
                need = max(need, 6 if ps == 4 else 10)
        elif c.kind in ("valu", "trans", "ds_read", "ds_write", "vload", "vstore", "dma"):
            if pw & (set(c.rd) | set(c.wr)): need = max(need, 8 if ps == 4 else 12)
        if c.is_valu() and set(p.srcc) & set(c.wr): need = max(need, 3 if ps == 4 else 7)
    if p.kind == "salu" and ("m0", 0) in pw and c.kind == "dma": need = max(need, 1)
    if p.kind in ("vstore", "ds_write") and (p.wide or "b128" in p.op):
        if p.kind == "vstore" and set(p.rd) & set(c.wr) and c.kind != "salu": need = max(need, 2 if c.is_valu() else 1)
    return need

def pad_hazards(stream, stats=None):
    out = []
    for c in stream:
        if c.kind in ("label", "directive", "waitvm"):
            out.append(c); continue
        dist = 0; need = 0
        for p in reversed(out):
            if dist >= 12: break
            if p.kind not in ("label", "directive", "waitvm"):
                n = hazard_need(p, c)
                if n - dist > need: need = n - dist
            dist += p.states()
        if need > 0:
            if stats is not None: stats.append((need, c.text))
            out.append(I("s_nop %d" % (need - 1)))
        out.append(c)
    return out

def insert_waits(stream, vm_init=None):
    out = []
    lg = []
    vm = list(vm_init or [])
    for c in stream:
        if c.kind == "wait":
            m = re.search(r"lgkmcnt\((\d+)\)", c.text)
            if m: n = int(m.group(1)); lg = lg[len(lg) - n:] if n < len(lg) else lg
            if m and int(m.group(1)) == 0: lg = []
            m = re.search(r"vmcnt\((\d+)\)", c.text)
            if m:
                n = int(m.group(1)); vm = vm[len(vm) - n:] if 0 < n < len(vm) else ([] if n == 0 else vm)
            out.append(c); continue
        needl = None; needv = None
        if c.kind == "waitvm":
            tags = set(c.text.split()[1:])
            for k, p in enumerate(vm):
                if p.tag in tags: needv = len(vm) - k - 1
        else:
            touch = set(c.rd) | set(c.wr)
            for k, p in enumerate(lg):
                if p.kind in ("ds_read", "smem") and set(p.wr) & touch: needl = len(lg) - k - 1
                if p.kind == "smem" and set(p.wr) & touch: needl = 0
            for k, p in enumerate(vm):
                if p.kind == "vload" and set(p.wr) & touch: needv = len(vm) - k - 1
        w = []
        if needv is not None:
            assert needv <= 63
            w.append("vmcnt(%d)" % needv); vm = vm[len(vm) - needv:] if needv else []
        if needl is not None:
            if any(p.kind == "smem" for p in lg): needl = 0
            needl = min(needl, 15)
            w.append("lgkmcnt(%d)" % needl); lg = lg[len(lg) - needl:] if needl else []
        if w: out.append(I("s_waitcnt " + " ".join(w)))
        if c.kind == "waitvm": continue
        out.append(c)
        if c.kind in ("ds_read", "ds_write", "smem"): lg.append(c)
        if c.kind in ("vload", "vstore", "dma"):
            vm.append(c)
            assert len(vm) <= 63, "vmcnt overflow at " + c.text
    return out, vm, lg

class Op:
    def __init__(self, text, cost=4, lo=0, hi=10**9, deps=(), tag=None):
        self.lines = text if isinstance(text, list) else [text]
        self.cost = cost; self.lo = lo; self.hi = hi
        self.deps = [d if isinstance(d, tuple) else (d, 0) for d in deps if d is not None]
        self.gap = None; self.tag = tag; self.seq = Op._n; Op._n += 1
    _n = 0

def schedule(ngaps, ops, cap=8):
    changed = True
    while changed:
        changed = False
        for o in ops:
            for d, dist in o.deps:
                if d.gap is None and d.hi > o.hi - dist:
                    d.hi = o.hi - dist; changed = True
                if o.lo < d.lo + dist and d.gap is None:
                    o.lo = d.lo + dist; changed = True
    gaps = [[] for _ in range(ngaps)]
    pending = sorted(ops, key=lambda o: (o.hi, o.seq))
    for g in range(ngaps):
        used = 0
        progress = True
        while progress:
            progress = False
            for o in pending:
                if o.lo > g: continue
                if any(d.gap is None or d.gap + dist > g for d, dist in o.deps): continue
                if used + o.cost <= cap or o.hi <= g or g == ngaps - 1:
                    o.gap = g; gaps[g].append(o); used += o.cost; pending.remove(o); progress = True
                    break
    if pending:
        raise RuntimeError("unscheduled: %s" % [(o.lines, o.lo, o.hi) for o in pending][:5])
    late = [(o.lines[0], o.gap, o.hi) for o in ops if o.gap > o.hi]
    if late: raise RuntimeError("deadline missed: %s" % late[:5])
    return gaps

def weave(mfmas, ops, cap=8, pre=None):
    gaps = schedule(len(mfmas), ops, cap)
    out = []
    cyc = 0
    for g, m in enumerate(mfmas):
        out.append(I(m))
        c = 0
        for o in gaps[g]:
            for l in o.lines: out.append(I(l, tag=o.tag))
            c += o.cost
        cyc += 8 + max(8, c)
    return out, cyc

def lines(txt, tag=None):
    return [I(l, tag=tag) for l in txt.strip("\n").split("\n") if l.strip() and not l.strip().startswith(";")]

def check_m0(stream):
    last = None
    for i in stream:
        if ("m0", 0) in i.wr: last = i
        if i.kind == "dma":
            assert last is not None and last.tag == i.tag, ("m0 mismatch", i.text, i.tag, last and last.tag)

import os
STAMP = bool(os.environ.get("STAMP"))
STAMP_S0 = 64
class Stamps:
    def __init__(self): self.n = 0
    def line(self):
        n = self.n; self.n += 1
        return f"{os.environ.get('STAMPOP', 's_memrealtime')} s[{STAMP_S0+2*n}:{STAMP_S0+2*n+1}]"
    def dump(self, srd, sW, base, v0=250):
        l = ["s_waitcnt lgkmcnt(0)", "s_lshl_b32 s3, s2, 2", f"s_add_u32 s3, s3, s{sW}", "s_lshl_b32 s3, s3, 6", f"s_add_u32 s3, s3, {base}",
             f"v_mov_b32 v{v0}, 0"]
        for i in range(self.n):
            l += [f"v_mov_b32 v{v0+1}, s{STAMP_S0+2*i}", f"buffer_store_dword v{v0+1}, v{v0}, s[{srd}:{srd+3}], s3 offen offset:{4*i}", "s_nop 1"]
        return lines("\n".join(l))
```

```python
from core import *
from layout import *

def srd(n, lo, hi, size):
    return f"""
s_mov_b32 s{n}, {lo}
s_mov_b32 s{n+1}, {hi}
s_mov_b32 s{n+2}, {size}
s_mov_b32 s{n+3}, 0x20000
"""

def gen_k1(name="k1_kernel"):
    S = []
    st = Stamps()
    vXa, vXb, vWa, vWb = 1, 2, 3, 4
    vXr = [5, 6, 7, 8]
    vWr = lambda ct, win: 9 + win * 4 + ct
    vL16 = 21
    vT = [22, 23, 24, 25, 26, 27, 28, 29, 30, 31]
    ACC = [32, 96]
    WB = 160; NWB = 24
    sW, sH, sKB = 24, 25, 26
    sXb, sWb, sM0x, sM0w = 27, 28, 29, 30
    sK = [32, 33, 34, 35]; sV = [36, 37, 38, 39]
    sT = [40, 41, 42, 43]; sC = 44
    S += lines(f"""
s_cmp_ge_u32 s2, 256
s_cbranch_scc1 {name}_end
s_load_dwordx4 s[48:51], s[0:1], 0
s_load_dwordx4 s[52:55], s[0:1], 24
s_load_dwordx2 s[56:57], s[0:1], 96
s_getpc_b64 s[58:59]
{st.line() if STAMP else ""}
v_lshrrev_b32 v{vT[0]}, 6, v0
v_and_b32 v{vT[1]}, 63, v0
s_and_b32 s{sH}, s2, 7
s_lshl_b32 s{sH}, s{sH}, 2
s_lshr_b32 s{sT[0]}, s2, 3
v_readfirstlane_b32 s{sW}, v{vT[0]}
s_and_b32 s{sT[1]}, s{sT[0]}, 3
s_add_u32 s{sH}, s{sH}, s{sT[1]}
s_lshr_b32 s{sKB}, s2, 5
v_lshlrev_b32 v{vL16}, 4, v{vT[1]}
""")
    S += lines(f"""
s_lshl_b32 s{sT[1]}, s{sT[1]}, 12
v_lshlrev_b32 v{vT[2]}, 4, v0
v_add_u32 v{vT[2]}, s{sT[1]}, v{vT[2]}
global_load_dwordx4 v[252:255], v{vT[2]}, s[58:59]
""")
    S += lines(f"""
v_lshrrev_b32 v{vT[2]}, 3, v{vT[1]}          ; i/8
v_and_b32 v{vT[3]}, 7, v{vT[1]}              ; i%8
v_lshrrev_b32 v{vT[4]}, 1, v{vT[2]}          ; (i/8)>>1
v_xor_b32 v{vT[5]}, v{vT[3]}, v{vT[4]}
v_lshlrev_b32 v{vT[5]}, 4, v{vT[5]}
v_lshl_add_u32 v{vXa}, v{vT[2]}, 10, v{vT[5]}
v_xor_b32 v{vXb}, 64, v{vXa}
v_and_b32 v{vT[4]}, 1, v{vT[4]}
v_lshlrev_b32 v{vT[4]}, 1, v{vT[4]}
v_xor_b32 v{vT[5]}, v{vT[3]}, v{vT[4]}
v_lshlrev_b32 v{vT[5]}, 4, v{vT[5]}
v_lshl_add_u32 v{vWa}, v{vT[2]}, 13, v{vT[5]}
v_xor_b32 v{vWb}, 64, v{vWa}
""")
    S += lines("s_waitcnt lgkmcnt(0)")
    if STAMP: S += lines(st.line())
    S += lines(srd(4, "s50", "s51", 2048 * 1024))
    S += lines(srd(8, "s52", "s53", 512 * 8192))
    S += lines(srd(12, "s54", "s55", 512 * 8192))
    S += lines(srd(16, "s56", "s57", WS_END))
    S += lines(srd(20, "s48", "s49", 2048 * 1280))
    S += lines(f"""
s_lshl_b32 s{sT[0]}, s2, 3
s_lshl_b32 s{sT[1]}, s{sW}, 1
s_add_u32 s{sT[0]}, s{sT[0]}, s{sT[1]}
v_lshrrev_b32 v{vT[6]}, 5, v{vT[1]}
v_add_u32 v{vT[6]}, s{sT[0]}, v{vT[6]}       ; token
v_and_b32 v{vT[7]}, 31, v{vT[1]}             ; c
v_mul_u32_u24 v{vT[8]}, 1280, v{vT[6]}
v_lshl_add_u32 v{vT[8]}, v{vT[7]}, 3, v{vT[8]}
""")
    for j in range(5):
        S += lines(f"buffer_load_dwordx2 v[{32+2*j}:{33+2*j}], v{vT[8]}, s[20:23], 0 offen offset:{256*j}")
    S += lines(f"""
s_lshl_b32 s{sXb}, s{sKB}, 18
s_lshl_b32 s{sT[0]}, s{sW}, 16
s_add_u32 s{sXb}, s{sXb}, s{sT[0]}           ; (256kb+64w)*1024
s_lshl_b32 s{sWb}, s{sH}, 8
s_lshl_b32 s{sT[0]}, s{sW}, 17
s_add_u32 s{sWb}, s{sWb}, s{sT[0]}           ; h*256 + 16w*8192
s_lshl_b32 s{sM0x}, s{sW}, 13
s_lshl_b32 s{sM0w}, s{sW}, 11
""")
    tsel = [0]
    def tmp():
        tsel[0] = (tsel[0] + 1) % 4
        return sT[tsel[0]]
    def dmaX(kc, j):
        t = tmp()
        l = []
        if j % 4 == 0: l.append(f"s_add_u32 m0, s{sM0x}, {(kc % 3) * 32768 + j * 1024}")
        l.append(f"s_add_u32 s{t}, s{sXb}, {j * 8192 + kc * 128 - (j % 4) * 1024}")
        l.append(f"buffer_load_dwordx4 v{vXb if j % 2 else vXa}, s[4:7], s{t} offen offset:{(j % 4) * 1024} lds")
        return l
    SLOTBASE = [6 * 16384, 6 * 16384, 0, 4 * 16384]
    def dmaW(slot, p, odd):
        t = tmp()
        srdn = 8 if slot < 2 else 12
        l = []
        if odd == 0: l.append(f"s_add_u32 m0, s{sM0w}, {SLOTBASE[slot] + p * 8192}")
        l.append(f"s_add_u32 s{t}, s{sWb}, {(64 * p + 8 * odd) * 8192 + (slot % 2) * 128 - odd * 1024}")
        l.append(f"buffer_load_dwordx4 v{vWb if odd else vWa}, s[{srdn}:{srdn+3}], s{t} offen offset:{odd * 1024} lds")
        return l
    def emit(ls, tag):
        for x in ls: S.append(I(x, tag=tag))
    for kc in range(3):
        for j in range(8): emit(dmaX(kc, j), f"X{kc}")
        for odd in range(2): emit(dmaW(0, kc, odd), f"W0_{kc}")
    for p in range(3, 8):
        for odd in range(2): emit(dmaW(0, p, odd), f"W0_{p}")
    if STAMP: S += lines(st.line())
    S += lines(f"""
v_and_b32 v{vT[2]}, 15, v{vT[1]}             ; r
v_lshrrev_b32 v{vT[3]}, 4, v{vT[1]}          ; g
v_lshrrev_b32 v{vT[4]}, 1, v{vT[2]}
v_xor_b32 v{vT[4]}, v{vT[4]}, v{vT[3]}
v_lshlrev_b32 v{vT[4]}, 4, v{vT[4]}
v_lshl_add_u32 v{vT[4]}, v{vT[2]}, 7, v{vT[4]}
v_add_u32 v{vXr[0]}, s{sM0x}, v{vT[4]}
v_xor_b32 v{vXr[1]}, 64, v{vXr[0]}
v_add_u32 v{vXr[2]}, 0x10000, v{vXr[0]}
v_add_u32 v{vXr[3]}, 0x10000, v{vXr[1]}
v_lshrrev_b32 v{vT[4]}, 2, v{vT[2]}          ; r'
v_and_b32 v{vT[5]}, 3, v{vT[2]}              ; c'
v_lshl_add_u32 v{vT[9]}, v{vT[3]}, 3, v{vT[4]}   ; 8g+r'
v_lshlrev_b32 v{vT[9]}, 7, v{vT[9]}
v_lshl_add_u32 v{vT[9]}, v{vT[5]}, 3, v{vT[9]}   ; (8g+r')*128 + c'*8
v_lshrrev_b32 v{vT[4]}, 1, v{vT[4]}          ; (r'>>1)&1
v_and_b32 v{vT[3]}, 1, v{vT[3]}
v_lshl_or_b32 v{vT[4]}, v{vT[3]}, 1, v{vT[4]}    ; f
""")
    for ct in range(4):
        S += lines(f"""
v_xor_b32 v{vT[5]}, {ct}, v{vT[4]}
v_lshl_add_u32 v{vWr(ct,0)}, v{vT[5]}, 5, v{vT[9]}
v_add_u32 v{vWr(ct,1)}, 0x10000, v{vWr(ct,0)}
v_add_u32 v{vWr(ct,2)}, 0x20000, v{vWr(ct,0)}
""")
    S += lines(f"""
s_lshl_b32 s{sT[0]}, s{sH}, 19
s_lshl_b32 s{sT[1]}, s{sKB}, 16
s_add_u32 s{sT[0]}, s{sT[0]}, s{sT[1]}
s_lshl_b32 s{sT[1]}, s{sW}, 14
s_add_u32 s{sT[0]}, s{sT[0]}, s{sT[1]}       ; h*512K + (16kb+4w)*4096
s_mov_b32 s{sC}, {f32(SCALE)}
""")
    for r in range(4):
        S += lines(f"s_add_u32 s{sK[r]}, s{sT[0]}, {KF + r * 4096}")
        S += lines(f"s_add_u32 s{sV[r]}, s{sT[0]}, {VF + r * 4096}")
    E = [44 + i for i in range(20)]
    for j in range(10):
        S += lines(f"v_lshlrev_b32 v{E[2*j]}, 16, v{32+j}\nv_and_b32 v{E[2*j+1]}, 0xffff0000, v{32+j}")
    if STAMP: S += lines(st.line())
    def allreduce(r, t):
        return lines(f"""
v_add_f32_dpp v{r}, v{r}, v{r} row_ror:8 row_mask:0xf bank_mask:0xf
v_add_f32_dpp v{r}, v{r}, v{r} row_ror:4 row_mask:0xf bank_mask:0xf
v_add_f32_dpp v{r}, v{r}, v{r} row_ror:2 row_mask:0xf bank_mask:0xf
v_add_f32_dpp v{r}, v{r}, v{r} row_ror:1 row_mask:0xf bank_mask:0xf
v_mov_b32 v{t}, v{r}
v_permlane16_swap_b32 v{r}, v{t}
v_add_f32 v{r}, v{r}, v{t}
""")
    a0, a1, t0, mu, t1 = 64, 65, 66, 67, 68
    S += lines(f"v_add_f32 v{a0}, v{E[0]}, v{E[1]}\nv_add_f32 v{a1}, v{E[2]}, v{E[3]}")
    for j in range(4, 20, 2):
        S += lines(f"v_add_f32 v{a0}, v{a0}, v{E[j]}\nv_add_f32 v{a1}, v{a1}, v{E[j+1]}")
    S += lines(f"v_add_f32 v{a0}, v{a0}, v{a1}")
    S += allreduce(a0, t0)
    S += lines(f"v_mul_f32 v{mu}, {f32(1.0/640)}, v{a0}")
    D = [70 + i for i in range(20)]
    for j in range(20): S += lines(f"v_sub_f32 v{D[j]}, v{E[j]}, v{mu}")
    S += lines(f"v_mul_f32 v{a0}, v{D[0]}, v{D[0]}\nv_mul_f32 v{a1}, v{D[1]}, v{D[1]}")
    for j in range(2, 20, 2):
        S += lines(f"v_fmac_f32 v{a0}, v{D[j]}, v{D[j]}\nv_fmac_f32 v{a1}, v{D[j+1]}, v{D[j+1]}")
    S += lines(f"v_add_f32 v{a0}, v{a0}, v{a1}")
    S += allreduce(a0, t0)
    S += lines(f"""
v_mul_f32 v{a0}, {f32(1.0/640)}, v{a0}
v_cvt_pk_bf16_f32 v{a0}, v{a0}, v{mu}
v_and_b32 v{mu}, 0xffff0000, v{a0}
v_lshlrev_b32 v{a0}, 16, v{a0}
v_add_f32 v{a0}, {f32(1e-5)}, v{a0}
v_cvt_pk_bf16_f32 v{a0}, v{a0}, v{a0}
v_lshlrev_b32 v{a0}, 16, v{a0}
v_sqrt_f32 v{a0}, v{a0}
v_cvt_pk_bf16_f32 v{a0}, v{a0}, v{a0}
v_lshlrev_b32 v{a0}, 16, v{a0}               ; s
v_rcp_f32 v{a1}, v{a0}
""")
    for j in range(20): S += lines(f"v_sub_f32 v{D[j]}, v{E[j]}, v{mu}")
    for j in range(10): S += lines(f"v_cvt_pk_bf16_f32 v{32+j}, v{D[2*j]}, v{D[2*j+1]}")
    for j in range(10):
        S += lines(f"v_lshlrev_b32 v{E[2*j]}, 16, v{32+j}\nv_and_b32 v{E[2*j+1]}, 0xffff0000, v{32+j}")
    for j in range(20):
        S += lines(f"v_mul_f32 v{D[j]}, v{E[j]}, v{a1}\nv_fma_f32 v{E[j]}, -v{D[j]}, v{a0}, v{E[j]}\nv_fmac_f32 v{D[j]}, v{E[j]}, v{a1}")
    for j in range(10): S += lines(f"v_cvt_pk_bf16_f32 v{32+j}, v{D[2*j]}, v{D[2*j+1]}")
    S += lines(f"""
v_lshrrev_b32 v{t0}, 4, v{vT[6]}
v_mul_u32_u24 v{t0}, 20, v{t0}
v_lshrrev_b32 v{t1}, 3, v{vT[7]}
v_add_lshl_u32 v{t0}, v{t0}, v{t1}, 10
v_bfe_u32 v{t1}, v{vT[7]}, 1, 2
v_lshl_add_u32 v{t0}, v{t1}, 8, v{t0}
v_and_b32 v{t1}, 15, v{vT[6]}
v_lshl_add_u32 v{t0}, v{t1}, 4, v{t0}
v_and_b32 v{t1}, 1, v{vT[7]}
v_lshl_add_u32 v{t0}, v{t1}, 3, v{t0}
""")
    for j in range(5):
        S += lines(f"s_movk_i32 s{sT[j%4]}, {XN + j*4096}\nbuffer_store_dwordx2 v[{32+2*j}:{33+2*j}], v{t0}, s[16:19], s{sT[j%4]} offen")

    mf = []; ops = []
    X = lambda rt, ks: f"a[{(rt*16+ks)*4}:{(rt*16+ks)*4+3}]"
    acc = lambda st, ct, rt: ACC[st] + (ct * 4 + rt) * 4
    frags = []
    lastw = {}
    started = set()
    flip = [0]
    def group(slot, ct, kss):
        fidx = {}
        for ks in kss:
            fidx[ks] = len(frags); frags.append([slot, ct, ks, None, None])
        rts = range(4) if (flip[0] // 4) % 2 == 0 else range(3, -1, -1)
        for rt in rts:
            order = kss if flip[0] % 2 == 0 else kss[::-1]
            flip[0] += 1
            d = acc(slot % 2, ct, rt)
            for ks in order:
                f = fidx[ks]; w = WB + (f % NWB) * 4
                c = f"v[{d}:{d+3}]" if (slot, ct, rt) in started else "0"
                started.add((slot, ct, rt))
                wf = f"v[{w}:{w+3}]"
                a_, b_ = (wf, X(rt, ks)) if slot < 2 else (X(rt, ks), wf)
                if frags[f][3] is None: frags[f][3] = len(mf)
                frags[f][4] = len(mf)
                lastw[(slot, ct, rt)] = len(mf)
                mf.append(f"v_mfma_f32_16x16x32_bf16 v[{d}:{d+3}], {a_}, {b_}, {c}")
    for kc in range(8):
        for ct in range(4): group(0, ct, [2 * kc, 2 * kc + 1])
    for kq in range(4):
        for ct in range(4): group(1, ct, list(range(4 * kq, 4 * kq + 4)))
    for slot in (2, 3):
        for ct in range(4):
            for kh in range(2): group(slot, ct, list(range(8 * kh, 8 * kh + 8)))
    NG = len(mf)
    assert NG == 1024
    LEAD = 12
    syncs = {}
    for kc in range(1, 8): syncs[("A", kc)] = (32 * kc - LEAD, [f"X{kc}", f"W0_{kc}"])
    for kq in range(4): syncs[("B", kq)] = (256 + 64 * kq - LEAD - 4, [f"W1_{2*kq}", f"W1_{2*kq+1}"])
    syncs[("C", 0)] = (512 - 28, [f"W2_{p}" for p in range(8)])
    syncs[("D", 0)] = (768 - 28, [f"W3_{p}" for p in range(8)])
    sop = {}
    for k, (g, tags) in syncs.items():
        sop[k] = Op(["@waitvm " + " ".join(tags), "s_barrier"], cost=8, lo=g, hi=g); ops.append(sop[k])
    def xreads(kc):
        r = []
        for rt in range(4):
            for s_ in range(2):
                reg = kc % 3
                base = vXr[s_ + (2 if reg == 2 else 0)]
                off = (reg % 2) * 32768 + rt * 2048
                r.append(f"ds_read_b128 {X(rt, 2*kc+s_)}, v{base} offset:{off}")
        return r
    def wreads(f):
        slot, ct, ks, fu, lu = frags[f]
        addr = SLOTBASE[slot] + ks * 4096
        w = WB + (f % NWB) * 4
        win, off = addr >> 16, addr & 0xffff
        return [f"ds_read_b64_tr_b16 v[{w}:{w+1}], v{vWr(ct, win)} offset:{off}",
                f"ds_read_b64_tr_b16 v[{w+2}:{w+3}], v{vWr(ct, win)} offset:{off+512}"]
    if STAMP: S += lines(st.line())
    S.append(I("@waitvm X0 W0_0")); S += lines("s_barrier")
    if STAMP:
        S += lines(st.line())
        for g in (128, 256, 384, 512, 640, 768, 1020): ops.append(Op(st.line(), lo=g, hi=g))
    pre_f = [f for f in range(len(frags)) if frags[f][3] < 10]
    xr0 = xreads(0)
    for f in pre_f[:2]: S += lines("\n".join(wreads(f)))
    S += lines("\n".join(xr0))
    for f in pre_f[2:]: S += lines("\n".join(wreads(f)))
    for kc in range(1, 8):
        for n, r in enumerate(xreads(kc)):
            ops.append(Op(r, lo=0, hi=32 * kc - 5 + n // 2, deps=[sop[("A", kc)]]))
    for f, (slot, ct, ks, fu, lu) in enumerate(frags):
        if f in pre_f: continue
        key = {0: ("A", ks // 2), 1: ("B", ks // 4), 2: ("C", 0), 3: ("D", 0)}[slot]
        dep = sop.get(key)
        lo = frags[f - NWB][4] if f >= NWB else 0
        lo = max(lo, fu - 40)
        for r in wreads(f):
            ops.append(Op(r, lo=lo, hi=fu - 5, deps=[dep]))
    prev = [None]
    def dma_ops(ls, tag, lo, hi, deps=()):
        o = Op(ls, cost=4 * len(ls) + 4, lo=lo, hi=hi, deps=list(deps) + [prev[0]], tag=tag)
        ops.append(o); prev[0] = o
    plan = []
    for kc in range(3, 8):
        for j in range(8): plan.append((32 * (kc - 3) + 8 + j, 32 * (kc - 3) + 8 + 2 * j + 2, dmaX(kc, j), f"X{kc}", []))
    Bt = {0: 160, 1: 166, 2: 192, 3: 198, 4: 224, 5: 230, 6: 246, 7: 306}
    Bdep = {4: ("A", 7), 5: ("A", 7), 6: ("B", 0), 7: ("B", 1)}
    for p in range(8):
        for odd in range(2):
            plan.append((Bt[p] + 2 * odd, Bt[p] + 2 * odd + 6, dmaW(1, p, odd), f"W1_{p}", [sop[Bdep[p]]] if p in Bdep else []))
    for p in range(8):
        g = 256 + 12 * p + (16 if p >= 4 else 0)
        for odd in range(2): plan.append((g + 4 * odd, g + 4 * odd + 8, dmaW(2, p, odd), f"W2_{p}", [sop[("B", 0)]]))
    for p in range(8):
        g = 448 + 24 * p
        for odd in range(2): plan.append((g + 8 * odd, g + 8 * odd + 8, dmaW(3, p, odd), f"W3_{p}", [sop[("B", 3)]]))
    plan.sort(key=lambda x: x[0])
    for lo, hi, ls, tag, deps in plan: dma_ops(ls, tag, lo, hi, deps)
    stores = []
    for slot in (0, 1):
        for cp in range(2):
            for rt in range(4):
                e, o = acc(slot, 2 * cp, rt), acc(slot, 2 * cp + 1, rt)
                ready = max(lastw[(slot, 2*cp, rt)], lastw[(slot, 2*cp+1, rt)]) + 6
                dl = 512 + 256 * slot + 128 * cp - 4
                stores.append((ready, dl, e, o, True, f"buffer_store_dwordx4 v[{e}:{e+3}], v{vL16}, s[16:19], s{sK[rt]} offen offset:{(2*slot+cp)*1024} sc1"))
    for slot in (2, 3):
        for ct in range(4):
            for rp in range(2):
                e, o = acc(slot % 2, ct, 2 * rp), acc(slot % 2, ct, 2 * rp + 1)
                ready = max(lastw[(slot, ct, 2*rp)], lastw[(slot, ct, 2*rp+1)]) + 6
                stores.append((ready, 10**6, e, o, False, f"buffer_store_dwordx4 v[{e}:{e+3}], v{vL16}, s[16:19], s{sV[rp*2 + slot-2]} offen offset:{ct*1024} sc1"))
    stores.sort(key=lambda s: (s[0]))
    t = 0; tail = []
    for ready, dl, e, o, scale, sto in stores:
        t = max(t + 23, ready + 8)
        body = []
        if scale:
            body += [f"v_mul_f32 v{r}, s{sC}, v{r}" for r in list(range(e, e+4)) + list(range(o, o+4))]
        body += [f"v_cvt_pk_bf16_f32 v{e}, v{e}, v{e+1}", f"v_cvt_pk_bf16_f32 v{e+1}, v{e+2}, v{e+3}",
                 f"v_cvt_pk_bf16_f32 v{e+2}, v{o}, v{o+1}", f"v_cvt_pk_bf16_f32 v{e+3}, v{o+2}, v{o+3}"]
        if t >= NG - 2:
            tail += body + [sto]; continue
        assert t <= dl, (t, dl)
        p = None
        for b in body:
            p = Op(b, lo=max(ready, t - 10), hi=t, deps=[p]); ops.append(p)
        ops.append(Op(sto, cost=8, lo=t, hi=min(dl, t + 4), deps=[p]))
    body, cyc = weave(mf, ops)
    S += body
    S += lines("\n".join(tail))
    if STAMP:
        S += lines(st.line()); S += lines("s_waitcnt vmcnt(0)"); S += lines(st.line())
        S += st.dump(16, sW, DBG)
    S.append(I(f"{name}_end:"))
    S += lines("s_endpgm")
    check_m0(S)
    S, vm, lg = insert_waits(S)
    hz = []
    S = pad_hazards(S, hz)
    print(name, "model cycles", cyc, "insts", len(S), "nops", len(hz))
    return S
```

```python
from core import *
from layout import *
from k1 import srd

T_THR = 20.0
NEG = -1.0e30
vL16, vB0, vB1, vNEG, vM0, vM1 = 1, 2, 3, 4, 5, 6
vQa, vQb, vGa, vGb = 7, 8, 9, 10
vWr = lambda ct, win: 11 + win * 4 + ct
vT = [23, 24, 25, 26, 27]
ONES = 28
LACC = lambda qb: 32 + 4 * qb
NEGM = lambda qb: 48 + 4 * qb
SB = [64, 128]
KR = 192
O = lambda qb, db: (qb * 8 + db) * 4
Q = lambda qb, s: 128 + (qb * 4 + s) * 4
VR = 192
sW, sH, sI, sSL = 24, 25, 26, 27
sKs, sVs, sMa, sMb = 28, 29, 30, 31
sACT = [32, 33, 34, 35]
sXN = [36, 37, 38, 39]
sT = [40, 41, 42, 43]
sCnt, sWq, sWg, sW4k = 44, 45, 46, 47
sRet = 60
MASK = lambda kt, r: 64 + (kt * 4 + r) * 2
SK, SV, SWS, SWQ, SWG, SWU = 4, 8, 16, 12, 20, 52

def stamp():
    if not STAMP: return []
    return lines(f"""
{os.environ.get('STAMPOP', 's_memrealtime')} s[96:97]
s_waitcnt lgkmcnt(0)
v_mov_b32 v0, s96
buffer_store_dword v0, off, s[{SWS}:{SWS+3}], s98
s_add_u32 s98, s98, 4
""")
def r4(f, r): return f"{f}[{r}:{r+3}]"
MF = "v_mfma_f32_16x16x32_bf16"

def tiles(ty):
    d = {}
    if ty[0] == "S":
        for qb in range(4):
            for kt in range(4):
                if ty == "Sd2" and qb == 0: continue
                m = kt if (ty == "Sd1" and qb == 0) or (ty == "Sd2" and qb == 1) else None
                d[(qb, kt)] = m
    else:
        for qb in (2, 3):
            for kt in range(8):
                if ty == "Rd" and qb == 2 and kt >= 4: continue
                m = None
                if ty == "Rd" and ((qb == 2) or (qb == 3 and kt >= 4)): m = kt % 4
                d[(qb, kt)] = m
    return d
def sreg(ty, par, qb, kt):
    ks = kt // 2
    G = qb * 2 + ks if ty[0] == "S" else (ks // 2) * 4 + (qb - 2) * 2 + ks % 2
    return SB[par] + G * 8 + (kt % 2) * 4
def sweeps(ty):
    if ty[0] == "S": return [(qb, qb, 0) for qb in range(4) if not (ty == "Sd2" and qb == 0)]
    return [(j, 2 + j % 2, j // 2) for j in range(4) if not (ty == "Rd" and j == 2)]

def dma_item(kind, slot_s, off, tag):
    srdn, src = (SK, sKs) if kind == "K" else (SV, sVs)
    out = []
    for j in range(4):
        l = []
        if j == 0: l += [f"s_add_u32 m0, s{slot_s}, {off}", "s_nop 0"]
        l.append(f"buffer_load_dwordx4 v{vL16}, s[{srdn}:{srdn+3}], s{src} offen offset:{j*1024} lds")
        if j == 3: l.append(f"s_add_u32 s{src}, s{src}, 0x4000")
        out.append(l)
    return out

def qk_mfmas(nxt, pn, mf, czero=False):
    tl = tiles(nxt)
    nkt = 4 if nxt[0] == "S" else 8
    first = {}; last = {}; kuse = {}
    flip = 0
    for kt in range(nkt):
        qbs = [qb for qb in range(4) if (qb, kt) in tl]
        if kt % 2: qbs = qbs[::-1]
        for qb in qbs:
            d = sreg(nxt, pn, qb, kt)
            ss = [0, 1, 2, 3] if flip % 2 == 0 else [3, 2, 1, 0]
            flip += 1
            first[(qb, kt)] = len(mf)
            for n, s in enumerate(ss):
                if n: c = r4("v", d)
                elif tl[(qb, kt)] is not None: c = r4("v", d)
                else: c = "0" if czero else r4("v", NEGM(qb))
                k = KR + ((kt % 4) * 4 + s) * 4
                kuse.setdefault((kt, s), [len(mf), 0])[1] = len(mf)
                mf.append(f"{MF} {r4('v', d)}, {r4('v', k)}, {r4('a', Q(qb, s))}, {c}")
            last[(qb, kt)] = len(mf) - 1
    return tl, first, last, kuse

def mask_init(nxt, pn, tl, czero=False):
    out = []
    for (qb, kt), m in tl.items():
        if m is None: continue
        d = sreg(nxt, pn, qb, kt)
        for r in range(4):
            src = "0" if czero else f"v{NEGM(qb)}"
            out.append(((qb, kt), f"v_cndmask_b32 v{d+r}, {src}, v{vNEG}, s[{MASK(m, r)}:{MASK(m, r)+1}]"))
    full = tiles(nxt[0])
    absent = []
    for key in full:
        if key not in tl:
            d = sreg(nxt, pn, *key)
            absent += [f"v_mov_b32 v{d+r}, v{vNEG}" for r in range(4)]
    return out, absent

def body(cur, nxt, par, name):
    pn = 1 - par
    swap = cur[0] == "R" and par == 1
    B0, B1 = (vB1, vB0) if swap else (vB0, vB1)
    Ma, Mb = (sMb, sMa) if swap else (sMa, sMb)
    mf = []; ops = []; pre = []
    if nxt:
        tl, first, last, kuse = qk_mfmas(nxt, pn, mf)
    nA = len(mf)
    sw = sweeps(cur)
    puse = {}; vuse = {}
    flip = 0
    for n, (j, qb, vh) in enumerate(sw):
        if cur[0] == "S": dbs = range(8) if n % 2 == 0 else range(7, -1, -1)
        else: dbs = range(8) if j in (1, 2) else range(7, -1, -1)
        if cur == "Rd" and j == 3: dbs = range(8)
        for db in dbs:
            o = O(qb, db)
            for k2 in ((0, 1) if flip % 2 == 0 else (1, 0)):
                p = SB[par] + (2 * j + k2) * 8
                v = VR + (k2 * 8 + db) * 4
                puse.setdefault(2 * j + k2, len(mf))
                vuse.setdefault((vh, k2, db), [len(mf), 0])[1] = len(mf)
                mf.append(f"{MF} {r4('a', o)}, {r4('a', v)}, {r4('v', p)}, {r4('a', o)}")
            flip += 1
        for k2 in ((0, 1) if flip % 2 == 0 else (1, 0)):
            p = SB[par] + (2 * j + k2) * 8
            mf.append(f"{MF} {r4('v', LACC(qb))}, {r4('v', ONES)}, {r4('v', p)}, {r4('v', LACC(qb))}")
        flip += 1
    NG = len(mf)
    for n, (j, qb, vh) in enumerate(sw):
        for k2 in (0, 1):
            G = 2 * j + k2; b = SB[par] + G * 8
            dl = min(puse[2 * j], puse[2 * j + 1]) - 3
            if dl < 4:
                for i in range(8): pre.append(f"v_exp_f32 v{b+i}, v{b+i}")
                for i in range(4): pre.append(f"v_cvt_pk_bf16_f32 v{b+i}, v{b+2*i}, v{b+2*i+1}")
                continue
            pc = None
            for i in range(4):
                e0 = Op(f"v_exp_f32 v{b+2*i}, v{b+2*i}", 8); e1 = Op(f"v_exp_f32 v{b+2*i+1}, v{b+2*i+1}", 8)
                c = Op(f"v_cvt_pk_bf16_f32 v{b+i}, v{b+2*i}, v{b+2*i+1}", 4, hi=dl, deps=[(e0, 1), (e1, 1), pc])
                ops += [e0, e1, c]; pc = c
    vbase = 32768 + (16384 * par if cur[0] == "S" else 0)
    for (vh, k2, db), (fu, lu) in sorted(vuse.items(), key=lambda x: x[1][0]):
        ln = f"ds_read_b128 {r4('a', VR + (k2*8+db)*4)}, v{B0} offset:{vbase + vh*16384 + (k2*8+db)*1024}"
        if vh == 0:
            if nA == 0: pre.insert(0, ln) if False else pre.append(ln)
            else: ops.append(Op(ln, lo=max(0, fu - 44), hi=fu - 8))
        else:
            ops.append(Op(ln, lo=vuse[(0, k2, db)][1], hi=fu - 8))
    if nA == 0:
        pre = [l for l in pre if l.startswith("ds_")] + [l for l in pre if not l.startswith("ds_")]
    if nxt:
        if nxt[0] == "R":
            for kt in range(4, 8):
                for s in range(4):
                    fu = kuse[(kt, s)][0]
                    ops.append(Op(f"ds_read_b128 {r4('v', KR + ((kt%4)*4+s)*4)}, v{B1} offset:{16384 + ((kt%4)*4+s)*1024}", lo=kuse[(kt-4, s)][1], hi=fu - 8))
        if nxt != "Rd":
            if cur[0] == "S" and nxt[0] == "S": kb, ko = B1, 16384 * par
            else: kb, ko = B0, 0
            for f in range(16):
                ops.append(Op(f"ds_read_b128 {r4('v', KR + f*4)}, v{kb} offset:{ko + f*1024}", lo=nA + 2 + (f * (NG - nA - 20)) // 16, hi=NG - 10))
        mi, absent = mask_init(nxt, pn, tl)
        for key, ln in mi:
            if first[key] < 4: pre.append(ln)
            else: ops.append(Op(ln, lo=0, hi=first[key] - 3))
        for ln in absent: ops.append(Op(ln, lo=0, hi=NG - 1))
        regs = []
        for key in sorted(tl, key=lambda k: last[k]):
            d = sreg(nxt, pn, *key); regs += [(d + r, last[key]) for r in range(4)]
        pm = [None, None]; n = 0; i = 0
        while i < len(regs):
            m = (vM0, vM1)[n % 2]
            if n < 2:
                a, b, c = regs[i], regs[i+1], regs[i+2]; i += 3
                o = Op(f"v_max3_f32 v{m}, v{a[0]}, v{b[0]}, v{c[0]}", lo=c[1] + 8, hi=NG - 6)
            else:
                a, b = regs[i], regs[i+1]; i += 2
                o = Op(f"v_max3_f32 v{m}, v{a[0]}, v{b[0]}, v{m}", lo=b[1] + 8, hi=NG - 6, deps=[pm[n % 2]])
            pm[n % 2] = o; ops.append(o); n += 1
        fm = Op(f"v_max_f32 v{vM0}, v{vM0}, v{vM1}", hi=NG - 4, deps=pm); ops.append(fm)
        ops.append(Op(f"v_cmp_lt_f32 vcc, {f32(T_THR)}, v{vM0}", hi=NG - 2, deps=[fm]))
        items = []
        if cur[0] == "S":
            items = [("K", Ma, 16384 * par), ("V", Mb, 32768 + 16384 * par)]
            if nxt[0] == "R": items.append(("K", Mb, 0))
            endvm = 8 if nxt in ("S", "Sd1") else (4 if nxt == "Sd2" else 0)
            span = NG - 8 if endvm == 8 else (NG * 6) // 10
        else:
            items = [("K", Ma, 16384), ("V", Mb, 32768), ("V", Mb, 49152), ("K", Mb, 0)]
            if nxt == "Rd": items = items[1:3]
            endvm = 0; span = (NG * 6) // 10
        if nxt == "Rd" and cur[0] == "S": items = items[1:2]
        nd = 4 * len(items); prev = None; n = 0
        for it, (kind, ms, off) in enumerate(items):
            for l in dma_item(kind, ms, off, None):
                g = 1 + (n * span) // nd
                prev = Op(l, cost=8 + 4 * (len(l) > 1), lo=g, hi=g + 4, deps=[prev], tag=f"it{it}"); ops.append(prev); n += 1
        if cur[0] == "S" and par == 1:
            tog = [f"v_xor_b32 v{vB0}, 0x10000, v{vB0}", f"v_xor_b32 v{vB1}, 0x10000, v{vB1}",
                   f"s_xor_b32 s{sMa}, s{sMa}, 0x10000", f"s_xor_b32 s{sMb}, s{sMb}, 0x10000"]
            for t in tog: ops.append(Op(t, lo=NG - 3, hi=NG - 1))
    bodyI, cyc = weave(mf, ops)
    S = lines("\n".join(pre)) if pre else []
    S += bodyI
    if nxt:
        fam = nxt[0]
        S += lines(f"""
s_cbranch_vccz {name}_ok
s_call_b64 s[{sRet}:{sRet+1}], rare_{fam}{pn}
{name}_ok:
s_waitcnt vmcnt({endvm}) lgkmcnt(0)
s_barrier
""")
    S += stamp()
    check_m0(S)
    S, vm, lg = insert_waits(S)
    hz = []
    S = pad_hazards(S, hz)
    print(f"  body {name}: mfma {NG} model {cyc} insts {len(S)} nops {len(hz)}")
    return S

def rowmax_lines(regs, t0, t1):
    l = [f"v_max3_f32 v{t0}, v{regs[0]}, v{regs[1]}, v{regs[2]}"]
    i = 3
    while i + 1 < len(regs):
        l.append(f"v_max3_f32 v{t0}, v{regs[i]}, v{regs[i+1]}, v{t0}"); i += 2
    if i < len(regs): l.append(f"v_max_f32 v{t0}, v{t0}, v{regs[i]}")
    l += [f"v_mov_b32 v{t1}, v{t0}", f"v_permlane16_swap_b32 v{t0}, v{t1}", f"v_max_f32 v{t0}, v{t0}, v{t1}",
          f"v_mov_b32 v{t1}, v{t0}", f"v_permlane32_swap_b32 v{t0}, v{t1}", f"v_max_f32 v{t0}, v{t0}, v{t1}"]
    return l

def qb_regs(fam, par, qb):
    return [sreg(fam, par, qb, kt) + r for kt in range(4 if fam == "S" else 8) for r in range(4)]

def rare(fam, par):
    l = [f"rare_{fam}{par}:", "s_nop 7", "s_nop 7"]
    t0, t1, t2 = vT[0], vT[1], vT[2]
    for qb in (range(4) if fam == "S" else (2, 3)):
        regs = qb_regs(fam, par, qb)
        l += rowmax_lines(regs, t0, t1)
        l += [f"v_max_f32 v{t0}, 0, v{t0}", f"v_exp_f32 v{t1}, -v{t0}"]
        l += [f"v_sub_f32 v{r}, v{r}, v{t0}" for r in regs]
        l += [f"v_sub_f32 v{NEGM(qb)+r}, v{NEGM(qb)+r}, v{t0}" for r in range(4)]
        l += [f"v_mul_f32 v{LACC(qb)+r}, v{LACC(qb)+r}, v{t1}" for r in range(4)]
        for a in range(O(qb, 0), O(qb, 0) + 32):
            l += [f"v_accvgpr_read_b32 v{t2}, a{a}", f"v_mul_f32 v{t2}, v{t2}, v{t1}", f"v_accvgpr_write_b32 a{a}, v{t2}"]
    l += ["s_nop 1", f"s_setpc_b64 s[{sRet}:{sRet+1}]"]
    return pad_hazards(lines("\n".join(l)))

def finalize(qbs, tpar):
    l = ["s_nop 7"]
    for n, qb in enumerate(qbs):
        l.append(f"v_rcp_f32 v{vT[n]}, v{LACC(qb)}")
    c = 0
    for n, qb in enumerate(qbs):
        for s in range(4):
            t = SB[tpar] + (c % 8) * 8; c += 1
            a0 = O(qb, 2 * s)
            l += [f"v_accvgpr_read_b32 v{t+i}, a{a0+i}" for i in range(8)]
            l += [f"v_mul_f32 v{t+i}, v{t+i}, v{vT[n]}" for i in range(8)]
            l += [f"v_cvt_pk_bf16_f32 v{t+i}, v{t+2*i}, v{t+2*i+1}" for i in range(4)]
            l += [f"s_add_u32 s{sT[c%4]}, s{sACT[qb]}, {s*4096}",
                  f"buffer_store_dwordx4 {r4('v', t)}, v{vL16}, s[{SWS}:{SWS+3}], s{sT[c%4]} offen sc1"]
    return pad_hazards(lines("\n".join(l)))

def proj(gu, st):
    S = []
    if gu: pairs = [("GU", 0), ("Q", 0), ("GU", 1), ("Q", 1), ("GU", 2), ("Q", 2), ("GU", 3), ("GU", 4), ("Q", 3), ("Q", 4)]
    else: pairs = [("Q", g) for g in range(5)]
    NP = len(pairs)
    XB = lambda g, qb, ks: 128 + ((g + 1) % 2) * 64 + (qb * 4 + ks) * 4
    tsel = [0]
    def tmp():
        tsel[0] = (tsel[0] + 1) % 4
        return sT[tsel[0]]
    def dma_unit(p, u):
        kind, g = pairs[p]
        L = (p % 5) * 2 + u
        out = []
        for j in range(4):
            t = tmp(); l = []
            if j == 0: l.append(f"s_add_u32 m0, s{sW4k}, {L*16384}")
            if kind == "Q":
                l.append(f"s_add_u32 s{t}, s{sWq}, {(128*g + 8*j)*8192 + u*128 - j*1024}")
                l.append(f"buffer_load_dwordx4 v{vQb if j%2 else vQa}, s[{SWQ}:{SWQ+3}], s{t} offen offset:{j*1024} lds")
            else:
                sn = SWG if u == 0 else SWU
                l.append(f"s_add_u32 s{t}, s{sWg}, {(128*g + 8*j)*3456 - j*1024}")
                l.append(f"buffer_load_dwordx4 v{vGb if j%2 else vGa}, s[{sn}:{sn+3}], s{t} offen offset:{j*1024} lds")
            out.append(l)
        return out
    def xloads(g):
        out = []
        for qb in range(4):
            for ks in range(4):
                l = [f"buffer_load_dwordx4 {r4('a', XB(g, qb, ks))}, v{vL16}, s[{SWS}:{SWS+3}], s{sXN[qb]} offen offset:{ks*1024}"]
                if ks == 3: l.append(f"s_add_u32 s{sXN[qb]}, s{sXN[qb]}, 0x1000")
                out.append(l)
        return out
    def emit(ls, tag=None):
        for l in ls:
            for x in l: S.append(I(x, tag=tag))
    emit(dma_unit(0, 0), "P0u0"); emit(xloads(0)); emit(dma_unit(0, 1), "P0u1")
    emit(dma_unit(1, 0), "P1u0"); emit(dma_unit(1, 1), "P1u1")
    emit(xloads(1))
    mf = []; ops = []
    frags = []; started = set(); lastw = {}
    flip = 0
    xlast = {}
    for p, (kind, g) in enumerate(pairs):
        for u in range(2):
            for ct in range(4):
                fidx = [len(frags) + k for k in range(4)]
                for ks in range(4): frags.append([p, u, ct, ks, None, None])
                for qb in (range(4) if (flip // 4) % 2 == 0 else range(3, -1, -1)):
                    if kind == "Q": d = r4("v", 64 + ((u * 4 + ct) * 4 + qb) * 4)
                    else: d = r4("a", ((u * 4 + ct) * 4 + qb) * 4)
                    for ks in ((0, 1, 2, 3) if flip % 2 == 0 else (3, 2, 1, 0)):
                        f = fidx[ks]
                        c = d if d in started else "0"
                        started.add(d)
                        if frags[f][4] is None: frags[f][4] = len(mf)
                        frags[f][5] = len(mf)
                        lastw[(kind, u, ct, qb)] = len(mf); xlast[g] = len(mf)
                        mf.append(f"{MF} {d}, {r4('v', KR + (f % 16) * 4)}, {r4('a', XB(g, qb, ks))}, {c}")
                    flip += 1
    NG = len(mf)
    sop = {}
    for p in range(1, NP):
        g = 128 * p - 20
        sop[p] = Op([f"@waitvm P{p}u0 P{p}u1", "s_barrier"], cost=8, lo=g, hi=g); ops.append(sop[p])
    sop_u1 = Op(["@waitvm P0u1", "s_barrier"], cost=8, lo=40, hi=40); ops.append(sop_u1)
    def wreads(f):
        p, u, ct, ks, fu, lu = frags[f]
        addr = ((p % 5) * 2 + u) * 16384 + ks * 4096
        w = KR + (f % 16) * 4
        win, off = addr >> 16, addr & 0xffff
        return [f"ds_read_b64_tr_b16 v[{w}:{w+1}], v{vWr(ct, win)} offset:{off}",
                f"ds_read_b64_tr_b16 v[{w+2}:{w+3}], v{vWr(ct, win)} offset:{off+512}"]
    S.append(I("@waitvm P0u0")); S += lines("s_barrier")
    S += stamp()
    for f in range(8): S += lines("\n".join(wreads(f)))
    for f in range(8, len(frags)):
        p, u, ct, ks, fu, lu = frags[f]
        dep = sop.get(p) if p else (sop_u1 if u else None)
        lo = max(frags[f - 16][5] if f >= 16 else 0, fu - 36)
        for r in wreads(f): ops.append(Op(r, lo=lo, hi=fu - 6, deps=[dep]))
    plan = []
    for p in range(2, NP):
        g0 = 4 + (p - 2) * 30 if p < 5 else 128 * (p - 3) - 16
        n = 0
        for u in range(2):
            for l in dma_unit(p, u):
                plan.append((g0 + 3 * n, l, f"P{p}u{u}", [sop[p - 3]] if p >= 5 else [])); n += 1
    for g in range(2, 5):
        g0 = xlast[g - 2] + 12
        for n, l in enumerate(xloads(g)): plan.append((g0 + 2 * n, l, None, []))
    base = NP - 5
    for n, (kind, ms, off) in enumerate([("K", sMa, 0), ("K", sMa, 16384), ("V", sMa, 32768), ("V", sMa, 49152), ("K", sMb, 0), ("K", sMb, 16384)]):
        p = base + 2 + n // 2
        g0 = 128 * p - 16 + (n % 2) * 16 + (48 if p <= base + 3 else 0)
        for j, l in enumerate(dma_item(kind, ms, off, None)): plan.append((g0 + 4 * j, l, f"A{n}", [sop[p]]))
    hs = []
    if gu:
        t0 = 128 * 8 + 8
        n = 0
        for fp in range(2):
            for qb in range(4):
                t = 32 + (n % 2) * 16
                ga = [((0 * 4 + 2 * fp + e) * 4 + qb) * 4 + r for e in range(2) for r in range(4)]
                ua = [((1 * 4 + 2 * fp + e) * 4 + qb) * 4 + r for e in range(2) for r in range(4)]
                ls = [f"v_accvgpr_read_b32 v{t+i}, a{ga[i]}" for i in range(8)] + [f"v_accvgpr_read_b32 v{t+8+i}, a{ua[i]}" for i in range(8)]
                ls += [f"v_mul_f32 v{t+i}, v{t+i}, v{t+8+i}" for i in range(8)]
                ls += [f"v_cvt_pk_bf16_f32 v{t+i}, v{t+2*i}, v{t+2*i+1}" for i in range(4)]
                g0 = t0 + 20 * n
                pv = hs[-2] if len(hs) >= 2 else None
                for x in ls:
                    pv = Op(x, lo=g0, hi=g0 + 30, deps=[pv]); ops.append(pv)
                tt = tmp()
                so = Op([f"s_add_u32 s{tt}, s{sACT[qb]}, s{sSL}", f"buffer_store_dwordx4 {r4('v', t)}, v{vL16 if fp == 0 else vT[4]}, s[{SWS}:{SWS+3}], s{tt} offen sc1"],
                        cost=12, lo=g0, hi=g0 + 34, deps=[pv]); ops.append(so); hs.append(so)
                for a in ga + ua: ops.append(Op(f"v_accvgpr_write_b32 a{a}, 0", lo=g0, hi=NG - 1, deps=[pv]))
                n += 1
    else:
        for a in range(128): ops.append(Op(f"v_accvgpr_write_b32 a{a}, 0", lo=100 + a, hi=NG - 1))
    plan.sort(key=lambda x: x[0])
    prev = None
    for g, l, tag, deps in plan:
        prev = Op(l, cost=4 + 4 * len(l), lo=g, hi=g + 12, deps=deps + [prev], tag=tag); ops.append(prev)
    tail = []
    for s in range(4):
        u, cp = s // 2, s % 2
        for qb in range(4):
            e = 64 + ((u * 4 + 2 * cp) * 4 + qb) * 4; o = e + 16
            ready = max(lastw[("Q", u, 2*cp, qb)], lastw[("Q", u, 2*cp+1, qb)]) + 8
            ls = [f"v_cvt_pk_bf16_f32 v{e}, v{e}, v{e+1}", f"v_cvt_pk_bf16_f32 v{e+1}, v{e+2}, v{e+3}",
                  f"v_cvt_pk_bf16_f32 v{e+2}, v{o}, v{o+1}", f"v_cvt_pk_bf16_f32 v{e+3}, v{o+2}, v{o+3}"]
            ls += [f"v_accvgpr_write_b32 a{Q(qb, s)+i}, v{e+i}" for i in range(4)]
            if ready > NG - 8: tail += ls; continue
            pv = None
            for x in ls:
                pv = Op(x, lo=ready, hi=NG - 1, deps=[pv]); ops.append(pv)
    sk = Op(["@waitvm A0 A1", "s_barrier"], cost=8, lo=NG - 40, hi=NG - 40); ops.append(sk)
    nf = len(frags)
    ktail = []
    for f in range(16):
        lu = max(frags[x][5] for x in range(nf - 16, nf) if x % 16 == f)
        ln = f"ds_read_b128 {r4('v', KR + f*4)}, v{vB0} offset:{f*1024}"
        if lu >= NG - 2: ktail.append(ln)
        else: ops.append(Op(ln, lo=lu, hi=NG - 1, deps=[sk]))
    bodyI, cyc = weave(mf, ops)
    S += bodyI
    S += lines("\n".join(ktail + tail))
    S += stamp()
    print(f"  proj gu={gu}: mfma {NG} model {cyc}")
    return S

def first_tile(ty):
    mf = []; ops = []; pre = []
    tl, first, last, kuse = qk_mfmas(ty, 0, mf, czero=True)
    mi, absent = mask_init(ty, 0, tl, czero=True)
    pre += [ln for key, ln in mi]
    for kt in range(4):
        for s in range(4):
            f = kt * 4 + s
            ops.append(Op(f"ds_read_b128 {r4('v', KR + f*4)}, v{vB0} offset:{16384 + f*1024}", lo=min(63, kuse[(kt, s)][1]), hi=63))
    for r in range(32, 48): ops.append(Op(f"v_mov_b32 v{r}, 0", lo=0, hi=60))
    bodyI, cyc = weave(mf, ops)
    S = lines("\n".join(pre)) if pre else []
    S += bodyI
    return S

def init_max():
    l = []
    for qb in range(4):
        regs = qb_regs("S", 0, qb)
        t0, t1 = vT[qb % 2 * 2], vT[qb % 2 * 2 + 1]
        l += rowmax_lines(regs, t0, t1)
        l += [f"v_sub_f32 v{r}, v{r}, v{t0}" for r in regs]
        l += [f"v_sub_f32 v{NEGM(qb)+r}, 0, v{t0}" for r in range(4)]
    return lines("\n".join(l))

def transposer(name):
    S = []
    sN, sK0, sLim, sDst = sSL, 56, 57, 58
    vA, vS = vT[0], vT[1]
    S += lines(f"""
s_cmp_ge_u32 s{sN}, 37
s_cbranch_scc1 {name}_tdone
s_load_dwordx2 s[48:49], s[0:1], 40
s_load_dwordx2 s[50:51], s[0:1], 72
s_mul_i32 s{sK0}, s{sN}, 5
s_movk_i32 s{sLim}, 128
s_movk_i32 s{sDst}, 0
s_waitcnt lgkmcnt(0)
s_mov_b32 s{SWG}, s48
s_mov_b32 s{SWG+1}, s49
s_mov_b32 s{SWG+2}, {4096*1280}
s_cmp_lt_u32 s{sN}, 26
s_cbranch_scc1 {name}_tsel
s_sub_u32 s{sK0}, s{sK0}, 130
s_movk_i32 s{sLim}, 54
s_movk_i32 s{sDst}, 128
s_mov_b32 s{SWG}, s50
s_mov_b32 s{SWG+1}, s51
s_mov_b32 s{SWG+2}, {1728*1280}
{name}_tsel:
s_add_u32 s{sDst}, s{sDst}, s{sK0}
s_mul_i32 s{sDst}, s{sDst}, 5120
s_mul_i32 s{sT[0]}, s{sW}, {2*NKS*5120}
s_add_u32 s{sDst}, s{sDst}, s{sT[0]}
s_add_u32 s{sDst}, s{sDst}, {WF}
s_mul_i32 s59, s{sK0}, 40960
s_mul_i32 s{sT[0]}, s{sW}, 10240
s_add_u32 s59, s59, s{sT[0]}
s_mov_b32 s62, s{sT[0]}
v_lshrrev_b32 v{vS}, 4, v{vL16}               ; lane
v_and_b32 v{vA}, 15, v{vS}
v_lshrrev_b32 v{vS}, 4, v{vS}                 ; g
v_lshrrev_b32 v{vT[2]}, 2, v{vA}              ; r'
v_lshl_add_u32 v{vS}, v{vS}, 2, v{vT[2]}      ; 4g+r'
v_mul_u32_u24 v{vS}, 1280, v{vS}
v_and_b32 v{vA}, 3, v{vA}
v_lshl_add_u32 v{vA}, v{vA}, 3, v{vS}
s_mul_i32 s{sT[0]}, s{sW}, 320
v_add_u32 v{vA}, s{sT[0]}, v{vA}
v_add_u32 v{vT[3]}, 0x1000, v{vL16}
""")
    def load(it):
        out = []
        for j in range(10):
            if j % 4 == 0:
                out.append(I(f"s_add_u32 m0, s62, {(it % 4) * 40960 + j * 1024}", tag=f"T{it}"))
                out.append(I(f"s_add_u32 s{sT[1]}, s59, {it * 40960 + j * 1024}", tag=f"T{it}"))
            out.append(I(f"buffer_load_dwordx4 v{vL16}, s[{SWG}:{SWG+3}], s{sT[1]} offen offset:{(j%4)*1024} lds", tag=f"T{it}"))
        return out
    for it in range(4): S += load(it)
    for it in range(5):
        S.append(I(f"@waitvm T{it}")); S += lines("s_barrier")
        if it == 1: S += load(4)
        S += lines(f"v_add_u32 v{vS}, {(it % 4) * 40960}, v{vA}")
        base = 64 + (it % 2) * 40
        for c in range(10):
            S += lines(f"ds_read_b64_tr_b16 v[{base+4*c}:{base+4*c+1}], v{vS} offset:{c*32}\nds_read_b64_tr_b16 v[{base+4*c+2}:{base+4*c+3}], v{vS} offset:{c*32 + 16*1280}")
        S += lines(f"""
s_add_u32 s{sT[2]}, s{sDst}, {it*5120}
s_add_u32 s{sT[3]}, s{sDst}, {it*5120 + NKS*5120}
s_add_u32 s{sT[0]}, s{sK0}, {it}
s_cmp_ge_u32 s{sT[0]}, s{sLim}
s_cselect_b32 s{sT[2]}, 0x7f000000, s{sT[2]}
s_cselect_b32 s{sT[3]}, 0x7f000000, s{sT[3]}
""")
        for c in range(10):
            nt = c % 5
            S += lines(f"buffer_store_dwordx4 {r4('v', base+4*c)}, v{vL16 if nt < 4 else vT[3]}, s[{SWS}:{SWS+3}], s{sT[2 + c//5]} offen offset:{(nt%4)*1024} sc1")
    S += lines("s_waitcnt lgkmcnt(0)\ns_barrier")
    check_m0(S)
    S, vm, lg = insert_waits(S)
    S += lines("s_waitcnt vmcnt(8)")
    S.append(I(f"{name}_tdone:"))
    return pad_hazards(S)

def gen_k2(name="k2_kernel"):
    st = Stamps()
    global STAMP_S0
    S = lines(f"""
s_cmp_ge_u32 s2, 256
s_cbranch_scc1 {name}_end
s_load_dwordx2 s[48:49], s[0:1], 16
s_load_dwordx4 s[52:55], s[0:1], 56
s_load_dwordx2 s[56:57], s[0:1], 96
s_getpc_b64 s[58:59]
v_lshrrev_b32 v{vT[0]}, 6, v0
v_and_b32 v{vT[1]}, 63, v0
s_and_b32 s{sT[2]}, s2, 7                    ; x
s_lshl_b32 s{sH}, s{sT[2]}, 2
s_lshr_b32 s{sT[0]}, s2, 3
v_readfirstlane_b32 s{sW}, v{vT[0]}
s_and_b32 s{sT[1]}, s{sT[0]}, 3              ; j
s_add_u32 s{sH}, s{sH}, s{sT[1]}
s_lshr_b32 s{sI}, s2, 5
v_lshlrev_b32 v{vL16}, 4, v{vT[1]}
s_and_b32 s{sT[0]}, s{sT[0]}, 15
s_lshl_b32 s{sT[0]}, s{sT[0]}, 12
v_lshlrev_b32 v{vT[2]}, 4, v0
v_add_u32 v{vT[2]}, s{sT[0]}, v{vT[2]}
global_load_dwordx4 v[44:47], v{vT[2]}, s[58:59]
s_mul_i32 s{sSL}, s{sT[2]}, 3
s_add_u32 s{sSL}, s{sSL}, s{sT[1]}           ; 3x+j
s_add_u32 s{sT[3]}, s{sT[2]}, s{sI}
s_and_b32 s{sT[3]}, s{sT[3]}, 7              ; (x+i)%8
s_add_u32 s{sT[0]}, s{sT[3]}, 19
s_cmp_eq_u32 s{sT[1]}, 3
s_cselect_b32 s{sSL}, s{sT[0]}, s{sSL}
s_cselect_b32 s{sCnt}, s{sT[3]}, 7
s_mul_i32 s63, s{sI}, 5
s_add_u32 s63, s63, s{sT[3]}
v_lshrrev_b32 v{vT[2]}, 3, v{vT[1]}          ; i/8
v_and_b32 v{vT[3]}, 7, v{vT[1]}              ; i%8
v_bfe_u32 v{vT[4]}, v{vT[2]}, 1, 1
v_lshlrev_b32 v{vT[4]}, 1, v{vT[4]}
v_xor_b32 v{vT[3]}, v{vT[3]}, v{vT[4]}
v_lshlrev_b32 v{vT[3]}, 4, v{vT[3]}
v_lshl_add_u32 v{vQa}, v{vT[2]}, 13, v{vT[3]}
v_xor_b32 v{vQb}, 64, v{vQa}
v_mul_u32_u24 v{vT[2]}, 3456, v{vT[2]}
v_add_u32 v{vGa}, v{vT[2]}, v{vT[3]}
v_xor_b32 v{vT[3]}, 64, v{vT[3]}
v_add_u32 v{vGb}, v{vT[2]}, v{vT[3]}
s_lshl_b32 s{sW4k}, s{sW}, 12
s_lshl_b32 s{sWq}, s{sH}, 8
s_lshl_b32 s{sT[0]}, s{sW}, 18
s_add_u32 s{sWq}, s{sWq}, s{sT[0]}           ; h*256 + 32w*8192
s_lshl_b32 s{sWg}, s{sSL}, 7
s_mul_i32 s{sT[0]}, s{sW}, {32*3456}
s_add_u32 s{sWg}, s{sWg}, s{sT[0]}
s_sub_u32 s{sT[1]}, 15, s{sI}
""")
    for qb in range(4):
        blk = sI if qb < 2 else sT[1]
        S += lines(f"""
s_lshl_b32 s{sT[0]}, s{blk}, 1
s_add_u32 s{sT[0]}, s{sT[0]}, {qb % 2}       ; tg
s_mul_i32 s{sACT[qb]}, s{sT[0]}, {NKS*4096}
s_lshl_b32 s{sT[0]}, s{sT[0]}, 2
s_add_u32 s{sT[0]}, s{sT[0]}, s{sW}          ; tt
s_mul_i32 s{sXN[qb]}, s{sT[0]}, 20480
""")
    S += lines("s_waitcnt lgkmcnt(0)")
    S += lines(srd(SWQ, "s48", "s49", 640 * 8192))
    S += lines(srd(SWG, "s52", "s53", 640 * 3456))
    S += lines(f"s_mov_b32 s52, s54\ns_mov_b32 s53, s55\ns_mov_b32 s54, {640*3456}\ns_mov_b32 s55, 0x20000")
    S += lines(srd(SWS, "s56", "s57", WS_END))
    if STAMP:
        S += lines(f"s_lshl_b32 s98, s2, 2\ns_add_u32 s98, s98, s{sW}\ns_lshl_b32 s98, s98, 7\ns_add_u32 s98, s98, {DBG2}")
        S += stamp()
    S += lines(f"""
s_lshl_b32 s{sT[0]}, s{sH}, 19
s_add_u32 s{sT[2]}, s{sT[0]}, {KF}
s_add_u32 s{SK}, s56, s{sT[2]}
s_addc_u32 s{SK+1}, s57, 0
s_add_u32 s{sT[2]}, s{sT[0]}, {VF}
s_add_u32 s{SV}, s56, s{sT[2]}
s_addc_u32 s{SV+1}, s57, 0
s_add_u32 s{sT[1]}, s{sT[1]}, 1
s_lshl_b32 s{SK+2}, s{sT[1]}, 15
s_mov_b32 s{SV+2}, s{SK+2}
s_mov_b32 s{SK+3}, 0x20000
s_mov_b32 s{SV+3}, 0x20000
s_mov_b32 s{sKs}, s{sW4k}
s_mov_b32 s{sVs}, s{sW4k}
s_mov_b32 s{sMa}, s{sW4k}
s_add_u32 s{sMb}, s{sW4k}, 0x10000
s_lshl_b32 s{sT[0]}, s{sW}, 10
s_lshl_b32 s{sT[2]}, s{sH}, 14
s_add_u32 s{sT[0]}, s{sT[0]}, s{sT[2]}
s_add_u32 s{sT[0]}, s{sT[0]}, {ACT}          ; ACT + w*1024 + 4h*4096
""")
    for qb in range(4): S += lines(f"s_add_u32 s{sACT[qb]}, s{sACT[qb]}, s{sT[0]}")
    S += lines(f"""
s_lshl_b32 s{sSL}, s{sSL}, 13
s_add_u32 s{sSL}, s{sSL}, {128*4096}
s_sub_u32 s{sSL}, s{sSL}, s{sT[2]}
v_mov_b32 v{vB0}, v{vL16}
v_add_u32 v{vB1}, 0x10000, v{vL16}
v_mov_b32 v{vNEG}, {f32(NEG)}
v_and_b32 v{vT[2]}, 15, v{vT[1]}             ; c / r
v_lshrrev_b32 v{vT[3]}, 4, v{vT[1]}          ; g
v_lshrrev_b32 v{vT[4]}, 2, v{vT[2]}          ; r'
v_lshl_add_u32 v{vM0}, v{vT[3]}, 3, v{vT[4]}
v_lshlrev_b32 v{vM0}, 7, v{vM0}
v_and_b32 v{vM1}, 3, v{vT[2]}
v_lshl_add_u32 v{vM0}, v{vM1}, 3, v{vM0}     ; (8g+r')*128 + c'*8
v_lshrrev_b32 v{vT[4]}, 1, v{vT[4]}
v_and_b32 v{vM1}, 1, v{vT[3]}
v_lshl_or_b32 v{vT[4]}, v{vM1}, 1, v{vT[4]}  ; f
""")
    for ct in range(4):
        S += lines(f"""
v_xor_b32 v{vM1}, {ct}, v{vT[4]}
v_lshl_add_u32 v{vWr(ct,0)}, v{vM1}, 5, v{vM0}
v_add_u32 v{vWr(ct,1)}, 0x10000, v{vWr(ct,0)}
v_add_u32 v{vWr(ct,2)}, 0x20000, v{vWr(ct,0)}
""")
    S += lines(f"""
s_lshl_b32 s{sT[0]}, s{sW}, 4
v_add_u32 v{vM0}, s{sT[0]}, v{vT[2]}
v_lshlrev_b32 v{vT[3]}, 2, v{vT[3]}
v_sub_u32 v{vM0}, v{vM0}, v{vT[3]}
""")
    for kt in range(4):
        for r in range(4):
            S += lines(f"v_cmp_gt_i32 s[{MASK(kt,r)}:{MASK(kt,r)+1}], {16*kt+r}, v{vM0}")
    for r in range(4): S += lines(f"v_mov_b32 v{ONES+r}, 0x3f803f80")
    S += lines(f"v_add_u32 v{vT[4]}, 0x1000, v{vL16}")
    S += lines(f"""
s_cmp_lt_u32 s{sCnt}, 5
s_cbranch_scc1 {name}_spare
""")
    S, _, _ = insert_waits(S); S = pad_hazards(S)
    def fin(X):
        check_m0(X)
        X, vm, lg = insert_waits(X, vm_init=[I("buffer_store_dword v0, v0, s[0:3], 0")] * 9)
        return pad_hazards(X)
    P1 = proj(True, st) + lines(f"s_waitcnt lgkmcnt(0)\n{name}_att:")
    S += fin(P1)
    S += lines(f"s_cmp_eq_u32 s{sI}, 0\ns_cbranch_scc1 {name}_f_d1")
    def ft(ty):
        X = first_tile(ty) + init_max() + lines("s_waitcnt vmcnt(4) lgkmcnt(0)\ns_barrier") + stamp()
        X, _, _ = insert_waits(X)
        return pad_hazards(lines("s_nop 1") + X)
    S += ft("S")
    S += lines(f"s_mov_b32 s{sCnt}, s{sI}\n{name}_sloop:")
    S += body("S", "S", 0, "b0ss")
    S += lines(f"s_sub_u32 s{sCnt}, s{sCnt}, 1\ns_cmp_eq_u32 s{sCnt}, 0\ns_cbranch_scc1 {name}_sexit")
    S += body("S", "S", 1, "b1ss")
    S += lines(f"s_branch {name}_sloop\n{name}_sexit:")
    S += body("S", "Sd1", 1, "b1sd1")
    S += lines(f"{name}_d1:")
    S += body("Sd1", "Sd2", 0, "b0d1d2")
    S += lines(f"s_cmp_eq_u32 s{sI}, 7\ns_cbranch_scc1 {name}_d2rd")
    S += body("Sd2", "R", 1, "b1d2r")
    S += finalize([0, 1], 1)
    S += lines(f"s_sub_u32 s{sCnt}, 7, s{sI}\n{name}_rloop:")
    S += body("R", "R", 0, "b0rr")
    S += lines(f"s_sub_u32 s{sCnt}, s{sCnt}, 1\ns_cmp_eq_u32 s{sCnt}, 0\ns_cbranch_scc1 {name}_rexit")
    S += body("R", "R", 1, "b1rr")
    S += lines(f"s_branch {name}_rloop\n{name}_rexit:")
    S += body("R", "Rd", 1, "b1rrd")
    S += lines(f"{name}_last:")
    S += body("Rd", None, 0, "b0rd")
    S += stamp()
    S += finalize([2, 3], 1)
    S += stamp()
    if STAMP: S += lines("s_waitcnt vmcnt(0)") + stamp()
    S += lines(f"{name}_end:\ns_endpgm")
    S += lines(f"{name}_f_d1:")
    S += ft("Sd1")
    S += lines(f"s_branch {name}_d1\n{name}_d2rd:")
    S += body("Sd2", "Rd", 1, "b1d2rd")
    S += finalize([0, 1], 1)
    S += lines(f"s_branch {name}_last\n{name}_spare:\ns_mov_b32 s{sSL}, s63")
    S += transposer(name)
    S += fin(proj(False, Stamps()) + lines(f"s_waitcnt lgkmcnt(0)\ns_branch {name}_att"))
    for fam in "SR":
        for par in range(2): S += rare(fam, par)
    print(name, "insts", len(S))
    return S
```

```python
from core import *
from layout import *
from k1 import srd

def gen_k3(name="k3_kernel"):
    S = []
    st = Stamps()
    vL16, vL16b, vX, vT0, vT1, vT2, vWr, vRd, vWr2 = 1, 2, 3, 4, 5, 6, 7, 8, 9
    XR = 10
    ACCS = 24
    ACCB = 104
    TMP = 184
    def buf(b, i):
        return (f"a[{b*72+4*i}:{b*72+4*i+3}]" if b < 3 else f"v[{TMP+4*i}:{TMP+4*i+3}]")
    sW, sTG, sCT = 24, 25, 26
    sA, sB, sAd, sBd, sAx, sBx = 27, 28, 29, 30, 31, 32
    sT = [40, 41, 42, 43]
    S += lines(f"""
s_cmp_ge_u32 s2, 256
s_cbranch_scc1 {name}_end
s_load_dwordx2 s[48:49], s[0:1], 0
s_load_dwordx2 s[50:51], s[0:1], 80
s_load_dwordx2 s[56:57], s[0:1], 96
s_getpc_b64 s[58:59]
{st.line() if STAMP else ""}
v_lshrrev_b32 v{vT0}, 6, v0
v_and_b32 v{vT1}, 63, v0
s_lshr_b32 s{sT[0]}, s2, 3                  ; j
v_readfirstlane_b32 s{sW}, v{vT0}
s_bfe_u32 s{sTG}, s2, 0x20001               ; (x>>1)
s_lshl_b32 s{sTG}, s{sTG}, 3
s_lshr_b32 s{sT[1]}, s{sT[0]}, 2
s_add_u32 s{sTG}, s{sTG}, s{sT[1]}
s_and_b32 s{sCT}, s2, 1
s_lshl_b32 s{sCT}, s{sCT}, 2
s_and_b32 s{sT[1]}, s{sT[0]}, 3
s_add_u32 s{sCT}, s{sCT}, s{sT[1]}
v_lshlrev_b32 v{vL16}, 4, v{vT1}
v_add_u32 v{vL16b}, 0x1000, v{vL16}
s_mul_i32 s{sA}, s{sTG}, {NKS*4096}
s_add_u32 s{sA}, s{sA}, {ACT}
s_mul_i32 s{sB}, s{sCT}, {NKS*5120}
s_add_u32 s{sB}, s{sB}, {WF}
s_mul_i32 s{sT[2]}, s{sW}, 14
s_cmp_eq_u32 s{sW}, 3
s_cselect_b32 s{sT[2]}, 41, s{sT[2]}
s_add_u32 s{sT[2]}, s{sT[2]}, 128
s_lshl_b32 s{sAd}, s{sT[2]}, 12
s_add_u32 s{sAd}, s{sAd}, s{sA}
s_mul_i32 s{sBd}, s{sT[2]}, 5120
s_add_u32 s{sBd}, s{sBd}, s{sB}
s_add_u32 s{sAx}, s{sAd}, {13*4096}
s_add_u32 s{sBx}, s{sBd}, {13*5120}
s_cmp_ge_u32 s{sW}, 2
s_cselect_b32 s{sAx}, 0x7f000000, s{sAx}
s_cselect_b32 s{sBx}, 0x7f000000, s{sBx}
s_lshl_b32 s{sT[2]}, s{sW}, 17
s_add_u32 s{sA}, s{sA}, s{sT[2]}             ; + 32w ksteps
s_mul_i32 s{sT[2]}, s{sW}, {32*5120}
s_add_u32 s{sB}, s{sB}, s{sT[2]}
s_waitcnt lgkmcnt(0)
""")
    ROT = int(os.environ.get("ROT", "4"))
    PH = int(os.environ.get("PH", "0"))
    sRA = [60 + j for j in range(0)]
    tabA = [STAMP_S0 + 22 + j for j in range(8)]
    tabB = [4, 5, 6, 7, 12, 13, 14, 15]
    S += lines(f"""
s_and_b32 s{sT[0]}, s{sTG}, 7
s_and_b32 s{sT[1]}, s{sCT}, 3
{"s_lshl_b32 s%d, s%d, 1" % (sT[1], sT[1]) if ROT == 8 else ""}
s_add_u32 s{sT[0]}, s{sT[0]}, s{sT[1]}
""")
    for j in range(ROT):
        S += lines(f"""
s_add_u32 s{sT[1]}, s{sT[0]}, {j}
s_and_b32 s{sT[1]}, s{sT[1]}, {ROT-1}
s_lshl_b32 s{tabA[j]}, s{sT[1]}, 13
s_add_u32 s{tabA[j]}, s{tabA[j]}, s{sA}
s_mul_i32 s{tabB[j]}, s{sT[1]}, 10240
s_add_u32 s{tabB[j]}, s{tabB[j]}, s{sB}
""")
    S += lines(srd(16, "s56", "s57", WS_END))
    S += lines(srd(20, "s48", "s49", 2048 * 1280))
    S += lines(srd(8, "s50", "s51", 2048 * 1280))
    NGRP = 23
    tsel = [0]
    def loads(n):
        b = n % 4
        out = []
        for kk in range(2):
            q = 2 * n + kk
            ta, tb = sT[tsel[0]], sT[tsel[0] + 1]; tsel[0] ^= 2
            pre = []
            if q == 13: ta, tb = sAx, sBx
            elif q < 14: pre = [f"s_add_u32 s{ta}, s{sAd}, {q*4096}", f"s_add_u32 s{tb}, s{sBd}, {q*5120}"]
            else:
                m = n - 7; wb = (m // ROT) * ROT * 2 + kk
                pre = [f"s_add_u32 s{ta}, s{tabA[m % ROT]}, {wb*4096}", f"s_add_u32 s{tb}, s{tabB[m % ROT]}, {wb*5120}"]
            ls = []
            for i in range(4): ls.append(f"buffer_load_dwordx4 {buf(b, kk*9+i)}, v{vL16}, s[16:19], s{ta} offen offset:{i*1024}")
            for i in range(5): ls.append(f"buffer_load_dwordx4 {buf(b, kk*9+4+i)}, v{vL16 if i < 4 else vL16b}, s[16:19], s{tb} offen offset:{(i%4)*1024}")
            ls[0] = pre + [ls[0]]
            out += [l if isinstance(l, list) else [l] for l in ls]
        return out
    for n in range(3):
        for l in loads(n): S += lines("\n".join(l))
    S += lines(f"""
s_and_b32 s{sT[0]}, s2, 0x18
s_lshl_b32 s{sT[0]}, s{sT[0]}, 9
v_lshlrev_b32 v{vT0}, 4, v0
v_add_u32 v{vT0}, s{sT[0]}, v{vT0}
global_load_dwordx4 v[20:23], v{vT0}, s[58:59]
v_and_b32 v{vT0}, 15, v{vT1}
v_lshrrev_b32 v{vT2}, 4, v{vT1}
s_lshl_b32 s{sT[0]}, s{sTG}, 6
s_lshl_b32 s{sT[1]}, s{sW}, 4
s_add_u32 s{sT[0]}, s{sT[0]}, s{sT[1]}
v_add_u32 v{vT0}, s{sT[0]}, v{vT0}           ; token
v_mul_u32_u24 v{vX}, 1280, v{vT0}
v_lshl_add_u32 v{vX}, v{vT2}, 3, v{vX}
s_mul_i32 s{sT[0]}, s{sCT}, 160
v_add_u32 v{vX}, s{sT[0]}, v{vX}
s_mul_i32 s{sT[0]}, s{sW}, 5120
v_add_u32 v{vWr}, s{sT[0]}, v{vL16}
v_add_u32 v{vWr2}, 40960, v{vWr}
s_mul_i32 s{sT[0]}, s{sW}, 20480
v_add_u32 v{vRd}, s{sT[0]}, v{vL16}
""")
    for nt in range(5):
        S += lines(f"buffer_load_dwordx2 v[{XR+2*nt}:{XR+2*nt+1}], v{vX}, s[20:23], 0 offen offset:{nt*32}")
    tsel[0] = 0
    mf = []; ops = []
    started = set()
    flip = 0
    lastB = {}
    for n in range(NGRP):
        b = n % 4
        base = ACCB if n < 7 else ACCS
        for tt in range(4):
            for nt in (range(5) if tt % 2 == 0 else range(4, -1, -1)):
                d = base + (tt * 5 + nt) * 4
                for kk in ((0, 1) if flip % 2 == 0 else (1, 0)):
                    c = f"v[{d}:{d+3}]" if d in started else "0"
                    started.add(d)
                    mf.append(f"v_mfma_f32_16x16x32_bf16 v[{d}:{d+3}], {buf(b, kk*9+4+nt)}, {buf(b, kk*9+tt)}, {c}")
                flip += 1
        if n + 3 < NGRP:
            prev = None
            for i, l in enumerate(loads(n + 3)):
                prev = Op(l, cost=8, lo=40 * n + 2 * i, hi=40 * n + 2 * i + 3, deps=[prev]); ops.append(prev)
    g0 = 40 * 7 + 8
    prev = None
    for tt in range(4):
        for nt in range(5):
            d = ACCB + (tt * 5 + nt) * 4
            prev = Op(f"ds_write_b128 v{vWr if tt < 2 else vWr2}, v[{d}:{d+3}] offset:{(tt%2)*20480 + nt*1024}", cost=8, lo=g0 + 2*(tt*5+nt) + 1, hi=g0 + 100, deps=[prev]); ops.append(prev)
    bar = Op(["s_waitcnt lgkmcnt(0)", "s_barrier"], cost=8, lo=g0 + 120, hi=g0 + 121, deps=[prev]); ops.append(bar)
    rds = []
    for w in range(4):
        for nt in range(5):
            d = ACCB + (w * 5 + nt) * 4
            o = Op(f"ds_read_b128 v[{d}:{d+3}], v{vRd} offset:{w*5120 + nt*1024}", lo=g0 + 123 + 2*(w*5+nt), hi=g0 + 200, deps=[bar]); ops.append(o); rds.append(o)
    prev = rds[-1]
    gs = g0 + 210
    def V(txt, cost=4):
        nonlocal prev
        prev = Op(txt, cost=cost, lo=gs, hi=len(mf) - 60, deps=[(prev, 1 if cost == 8 or prev.cost == 8 else 0)]); ops.append(prev)
    for i in range(20):
        r = ACCB + i
        V(f"v_add_f32 v{r}, v{r}, v{r+20}"); V(f"v_add_f32 v{r+40}, v{r+40}, v{r+60}")
    for i in range(20):
        r = ACCB + i
        V(f"v_add_f32 v{r}, v{r}, v{r+40}")
    for i in range(0, 20, 2):
        r = ACCB + i
        V(f"v_cvt_pk_bf16_f32 v{r+20}, v{r}, v{r+1}")
        V(f"v_lshlrev_b32 v{r}, 16, v{r+20}"); V(f"v_and_b32 v{r+1}, 0xffff0000, v{r+20}")
    for i in range(20):
        r = ACCB + i
        V(f"v_mul_f32 v{r+20}, {f32(-1.4426950408889634)}, v{r}")
    for i in range(20): V(f"v_exp_f32 v{ACCB+i+20}, v{ACCB+i+20}", 8)
    for i in range(20): V(f"v_add_f32 v{ACCB+i+20}, 1.0, v{ACCB+i+20}")
    for i in range(20): V(f"v_rcp_f32 v{ACCB+i+20}, v{ACCB+i+20}", 8)
    for i in range(20): V(f"v_mul_f32 v{ACCB+i}, v{ACCB+i}, v{ACCB+i+20}")
    for i in range(0, 20, 2):
        r = ACCB + i
        V(f"v_cvt_pk_bf16_f32 v{r+20}, v{r}, v{r+1}")
        V(f"v_lshlrev_b32 v{r}, 16, v{r+20}"); V(f"v_and_b32 v{r+1}, 0xffff0000, v{r+20}")
    for i in range(10):
        V(f"v_lshlrev_b32 v{ACCB+20+2*i}, 16, v{XR+i}"); V(f"v_and_b32 v{ACCB+21+2*i}, 0xffff0000, v{XR+i}")
    bar2 = Op(["s_barrier"], cost=4, lo=len(mf) - 50, hi=len(mf) - 49, deps=[prev]); ops.append(bar2)
    if STAMP:
        for g in (1, 120, 280, 440, 600, 760, 918): ops.append(Op(st.line(), lo=g, hi=g))
    body, cyc = weave(mf, ops)
    S += body
    for tt in range(4):
        for nt in range(5):
            d = ACCS + (tt * 5 + nt) * 4
            S += lines(f"ds_write_b128 v{vWr if tt < 2 else vWr2}, v[{d}:{d+3}] offset:{(tt%2)*20480 + nt*1024}")
    S += lines("s_waitcnt lgkmcnt(0)\ns_barrier")
    for nt in range(5):
        for w in range(4):
            d = ACCS + (w * 5 + nt) * 4
            S += lines(f"ds_read_b128 v[{d}:{d+3}], v{vRd} offset:{w*5120 + nt*1024}")
    for nt in range(5):
        rr = [ACCS + nt * 4 + i for i in range(4)]
        for r in rr: S += lines(f"v_add_f32 v{r}, v{r}, v{r+20}\nv_add_f32 v{r+40}, v{r+40}, v{r+60}")
        for r in rr: S += lines(f"v_add_f32 v{r}, v{r}, v{r+40}")
        for r in rr[::2]:
            S += lines(f"v_cvt_pk_bf16_f32 v{r+20}, v{r}, v{r+1}\nv_lshlrev_b32 v{r}, 16, v{r+20}\nv_and_b32 v{r+1}, 0xffff0000, v{r+20}")
        for r in rr: S += lines(f"v_mul_f32 v{r}, v{r}, v{r - ACCS + ACCB}")
        for r in rr[::2]:
            S += lines(f"v_cvt_pk_bf16_f32 v{r+20}, v{r}, v{r+1}\nv_lshlrev_b32 v{r}, 16, v{r+20}\nv_and_b32 v{r+1}, 0xffff0000, v{r+20}")
        for r in rr: S += lines(f"v_add_f32 v{r}, v{r}, v{r - ACCS + ACCB + 20}")
        S += lines(f"v_cvt_pk_bf16_f32 v{rr[0]+20}, v{rr[0]}, v{rr[1]}\nv_cvt_pk_bf16_f32 v{rr[0]+21}, v{rr[2]}, v{rr[3]}")
        S += lines(f"buffer_store_dwordx2 v[{rr[0]+20}:{rr[0]+21}], v{vX}, s[8:11], 0 offen offset:{nt*32}")
    if STAMP:
        S += lines(st.line()); S += lines("s_waitcnt vmcnt(0)"); S += lines(st.line())
        S += st.dump(16, sW, DBG + 2 * 65536)
    S.append(I(f"{name}_end:"))
    S += lines("s_endpgm")
    S, vm, lg = insert_waits(S)
    hz = []
    S = pad_hazards(S, hz)
    print(name, "model cycles", cyc, "insts", len(S), "nops", len(hz))
    return S
```

```python
XN  = 0x0000000
KF  = 0x0400000
VF  = 0x1400000
ACT = 0x2400000
WF  = 0x3C00000
DBG = 0x4380000
DBG2 = 0x43C0000
WS_END = 0x4400000
NKS = 182
SCALE = 1.4426950408889634 / (128 ** 0.5)
import struct
def f32(x): return "0x%08x" % struct.unpack("<I", struct.pack("<f", x))[0]
```

```python
import sys, os
sys.path.insert(0, "g")
from core import *
from layout import *
NAME = "recurrent_scan__compressed_kv_cla__glu_gated_bilinear__prompt"
def build(kernels, path):
    ref = open(f"cdna_kernels/{NAME}.s.ref").read().split("\n")
    hdr = [l for l in ref if l.startswith(";") and "@launch" not in l and "Override" not in l and "grid=ceil" not in l]
    out = list(hdr)
    for name, S, grid, block, lds, nv, na, ns in kernels:
        out.append(f"; @launch kernel={name} grid=({grid},1,1) block=({block},1,1) lds={lds}")
    out.append('.amdgcn_target "amdgcn-amd-amdhsa--gfx950"')
    out.append(".text")
    for name, S, grid, block, lds, nv, na, ns in kernels:
        out += [f".globl {name}", ".p2align 8", f".type {name},@function", f"{name}:"]
        for i in S:
            out.append(i.text if i.kind == "label" else "  " + i.text)
    out.append("  .fill 1024, 4, 0xBF810000")
    out.append('.section .rodata,"a"')
    for name, S, grid, block, lds, nv, na, ns in kernels:
        acc = (nv + 3) // 4 * 4
        out += [".p2align 6", f".amdhsa_kernel {name}",
                f"  .amdhsa_next_free_vgpr {acc + na if na else nv}", f"  .amdhsa_next_free_sgpr {ns}",
                f"  .amdhsa_accum_offset {acc}", "  .amdhsa_group_segment_fixed_size 0", "  .amdhsa_kernarg_size 104",
                "  .amdhsa_user_sgpr_count 2", "  .amdhsa_user_sgpr_kernarg_segment_ptr 1",
                "  .amdhsa_system_sgpr_workgroup_id_x 1", ".end_amdhsa_kernel"]
    open(path, "w").write("\n".join(out) + "\n")

if __name__ == "__main__":
    from k1 import gen_k1
    ks = [("k1_kernel", gen_k1(), 256, 256, 163840, 256, 256, 96)]
    try:
        from k2 import gen_k2
        ks.append(("k2_kernel", gen_k2(), 256, 256, 163840, 256, 256, 102))
    except ImportError: pass
    try:
        from k3 import gen_k3
        ks.append(("k3_kernel", gen_k3(), 256, 256, 98304, 256, 256, 96))
    except ImportError: pass
    only = os.environ.get("ONLY")
    if only: ks = [k for k in ks if k[0][:2] in only.split(",")]
    path = sys.argv[1] if len(sys.argv) > 1 else f"cdna_kernels/{NAME}.s"
    build(ks, path)
```

```python
import re

_REG = re.compile(r"\b([vas])(?:\[(\d+):(\d+)\]|(\d+)\b)")

def regs_of(opnd):
    out = []
    for m in _REG.finditer(opnd):
        f = m.group(1)
        if m.group(2) is not None:
            out += [(f, i) for i in range(int(m.group(2)), int(m.group(3)) + 1)]
        else:
            out.append((f, int(m.group(4))))
    o = opnd.strip()
    if re.search(r"\bvcc\b", o): out += [("vcc", 0)]
    if re.search(r"\bm0\b", o): out += [("m0", 0)]
    if re.search(r"\bexec\b", o): out += [("exec", 0)]
    return out

TRANS = ("v_exp_f32", "v_log_f32", "v_rcp_f32", "v_rsq_f32", "v_sqrt_f32", "v_sin_f32", "v_cos_f32")

class I:
    __slots__ = ("text", "op", "kind", "rd", "wr", "tag", "srcc", "srcab", "wide", "cost")
    def __init__(self, text, tag=None):
        self.text = text.strip()
        self.tag = tag
        t = self.text.split(";")[0].strip()
        self.srcc = []; self.srcab = []; self.wide = False
        if t.endswith(":"):
            self.op = "label"; self.kind = "label"; self.rd = []; self.wr = []; return
        parts = t.split(None, 1)
        op = parts[0]; self.op = op
        rest = parts[1] if len(parts) > 1 else ""
        ops = [x.strip() for x in re.split(r",(?![^\[]*\])", rest)] if rest else []
        rd, wr = [], []
        if op.startswith("v_mfma"):
            self.kind = "mfma"
            wr = regs_of(ops[0]); self.srcab = regs_of(ops[1]) + regs_of(ops[2]); self.srcc = regs_of(ops[3])
            rd = self.srcab + self.srcc
        elif op.startswith("ds_read") or op.startswith("ds_bpermute") or op.startswith("ds_swizzle"):
            self.kind = "ds_read"; wr = regs_of(ops[0]); rd = sum((regs_of(o.split()[0]) for o in ops[1:]), [])
        elif op.startswith("ds_write"):
            self.kind = "ds_write"; rd = sum((regs_of(o.split()[0]) for o in ops), [])
        elif op.startswith("buffer_load") or op.startswith("global_load"):
            if re.search(r"\blds\b", t) or "_lds_" in op:
                self.kind = "dma"; rd = sum((regs_of(o.split()[0]) for o in ops), []) + [("m0", 0)]
            else:
                self.kind = "vload"; wr = regs_of(ops[0]); rd = sum((regs_of(o.split()[0]) for o in ops[1:]), [])
        elif op.startswith("buffer_store") or op.startswith("global_store") or op.startswith("buffer_atomic") or op.startswith("global_atomic"):
            self.kind = "vstore"; rd = sum((regs_of(o.split()[0]) for o in ops), [])
            self.wide = "x4" in op or "x3" in op
        elif op.startswith("s_load") or op.startswith("s_memtime") or op.startswith("s_memrealtime") or op.startswith("s_buffer_load"):
            self.kind = "smem"; wr = regs_of(ops[0]); rd = sum((regs_of(o) for o in ops[1:]), [])
        elif op in ("s_waitcnt",):
            self.kind = "wait"
        elif op == "s_barrier":
            self.kind = "barrier"
        elif op == "s_nop":
            self.kind = "nop"
        elif op.startswith("s_cbranch") or op in ("s_branch", "s_endpgm", "s_setpc_b64", "s_call_b64", "s_swappc_b64"):
            self.kind = "branch"
            if "vcc" in op: rd = [("vcc", 0)]
            if op == "s_call_b64": wr = regs_of(ops[0])
            if op == "s_setpc_b64": rd = regs_of(ops[0])
        elif op.startswith("s_cmp") or op.startswith("s_bitcmp") or op == "s_setprio" or op == "s_sleep":
            self.kind = "salu"; rd = sum((regs_of(o) for o in ops), [])
        elif op.startswith("s_"):
            self.kind = "salu"; wr = regs_of(ops[0]); rd = sum((regs_of(o) for o in ops[1:]), [])
            if "saveexec" in op: wr += [("exec", 0)]
        elif op.startswith("v_"):
            self.kind = "trans" if op.replace("_e32", "").replace("_e64", "") in TRANS else "valu"
            wr = regs_of(ops[0]); rd = sum((regs_of(o.split(" row_")[0].split(" quad_perm")[0]) for o in ops[1:]), [])
            if op.startswith("v_fmac") or op.startswith("v_dot2c") or op.startswith("v_pk_fmac"): rd += wr
            if op.startswith("v_permlane") and "swap" in op:
                wr = regs_of(ops[0]) + regs_of(ops[1]); rd = list(wr)
            if op.startswith("v_add_co") or op.startswith("v_addc_co") or op.startswith("v_sub_co"):
                wr = regs_of(ops[0]) + regs_of(ops[1]); rd = sum((regs_of(o) for o in ops[2:]), [])
            if "_dpp" in op or " row_" in t or "quad_perm" in t:
                rd += wr
        elif op.startswith("."):
            self.kind = "directive"
        elif op == "@waitvm":
            self.kind = "waitvm"
        else:
            raise ValueError("unknown instr: " + text)
        self.rd = rd; self.wr = wr

    def is_valu(self): return self.kind in ("valu", "trans")
    def states(self):
        if self.kind == "nop": return int(self.text.split()[1], 0) + 1
        if self.kind in ("label", "directive", "waitvm"): return 0
        return 1

def mfma_passes(i):
    return 8 if "32x32x16" in i.op else 4

def hazard_need(p, c):
    need = 0
    pw = set(p.wr)
    if p.is_valu():
        vw = {r for r in pw if r[0] in "va"}
        sw = {r for r in pw if r[0] in ("s", "vcc")}
        if c.kind == "mfma" and vw & set(c.rd): need = max(need, 2)
        if p.kind == "trans" and c.kind == "valu" and vw & set(c.rd): need = max(need, 1)
        if p.kind == "trans" and c.kind in ("ds_write", "vstore") and vw & set(c.rd): need = max(need, 1)
        if c.is_valu():
            if sw & set(c.rd):
                need = max(need, 4 if c.op.startswith("v_readlane") or c.op.startswith("v_writelane") else 2)
            if vw & set(c.rd):
                if c.op.startswith("v_readlane") or c.op.startswith("v_readfirstlane"): need = max(need, 1)
                if c.op.startswith("v_permlane"): need = max(need, 2)
                if "_dpp" in c.op or " row_" in c.text or "quad_perm" in c.text: need = max(need, 2)
        if c.kind in ("dma", "vload", "vstore") and sw & set(c.rd): need = max(need, 5)
        if c.kind in ("salu", "smem") and sw & set(c.rd): need = max(need, 1)
    if p.kind == "mfma":
        ps = mfma_passes(p)
        if c.kind == "mfma":
            if pw & set(c.srcab): need = max(need, 8 if ps == 4 else 12)
            if pw & set(c.srcc):
                if not (c.srcc == p.wr and mfma_passes(c) == ps): need = max(need, 6 if ps == 4 else 10)
            elif pw & set(c.wr):
                need = max(need, 6 if ps == 4 else 10)
        elif c.kind in ("valu", "trans", "ds_read", "ds_write", "vload", "vstore", "dma"):
            if pw & (set(c.rd) | set(c.wr)): need = max(need, 8 if ps == 4 else 12)
        if c.is_valu() and set(p.srcc) & set(c.wr): need = max(need, 3 if ps == 4 else 7)
    if p.kind == "salu" and ("m0", 0) in pw and c.kind == "dma": need = max(need, 1)
    if p.kind in ("vstore", "ds_write") and (p.wide or "b128" in p.op):
        if p.kind == "vstore" and set(p.rd) & set(c.wr) and c.kind != "salu": need = max(need, 2 if c.is_valu() else 1)
    return need

def pad_hazards(stream, stats=None, before=None):
    nb = len(before[-16:]) if before else 0
    out = list(before[-16:]) if before else []
    for c in stream:
        if c.kind in ("label", "directive", "waitvm"):
            out.append(c); continue
        dist = 0; need = 0
        for p in reversed(out):
            if dist >= 12: break
            if p.kind not in ("label", "directive", "waitvm"):
                n = hazard_need(p, c)
                if n - dist > need: need = n - dist
            dist += p.states()
        if need > 0:
            if stats is not None: stats.append((need, c.text))
            out.append(I("s_nop %d" % (need - 1)))
        out.append(c)
    return out[nb:]

def insert_waits(stream, vm_init=None, cover=7, lg_init=None):
    out = []
    lg = [[x, -cover, -1] for x in (lg_init or [])]
    vm = [[x, -99, -1] for x in (vm_init or [])]
    nm = 0
    mpos = []
    def parse(c):
        nonlocal lg, vm
        m = re.search(r"lgkmcnt\((\d+)\)", c.text)
        if m:
            n = int(m.group(1)); lg = lg[len(lg) - n:] if n else []
        m = re.search(r"vmcnt\((\d+)\)", c.text)
        if m:
            n = int(m.group(1)); vm = vm[len(vm) - n:] if n else []
    for c in stream:
        if c.kind == "wait":
            m = re.search(r"lgkmcnt\((\d+)\)", c.text)
            if m and int(m.group(1)) < len(lg): lg = lg[len(lg) - int(m.group(1)):] if int(m.group(1)) else []
            m = re.search(r"vmcnt\((\d+)\)", c.text)
            if m and int(m.group(1)) < len(vm): vm = vm[len(vm) - int(m.group(1)):] if int(m.group(1)) else []
            out.append(c); continue
        kl = None; kv = None
        if c.kind == "waitvm":
            tags = set(c.text.split()[1:])
            for k, p in enumerate(vm):
                if p[0].tag in tags: kv = k
        else:
            touch = set(c.rd) | set(c.wr)
            for k, p in enumerate(lg):
                if p[0].kind in ("ds_read", "smem") and set(p[0].wr) & touch: kl = k
            for k, p in enumerate(vm):
                if p[0].kind == "vload" and set(p[0].wr) & touch: kv = k
        if kl is not None or kv is not None:
            pos = len(out)
            if c.kind == "mfma" and not any(p[0].kind == "smem" for p in lg):
                lastneed = max(lg[kl][2] if kl is not None else -1, vm[kv][2] if kv is not None else -1)
                for back in (1, 2, 3):
                    if len(mpos) < back: break
                    mp = mpos[-back]
                    if mp <= lastneed: break
                    if any(x.kind in ("label", "branch") for x in out[mp:]): break
                    end = mpos[-back + 1] if back > 1 else len(out)
                    cl = [_cls(x.text) for x in out[mp + 1:end]]
                    if gap_cycles(["s"] + cl) <= gap_cycles(cl):
                        pos = mp + 1; break
            at = sum(1 for q in mpos if q < pos)
            w = []
            if kv is not None:
                n = sum(1 for p in vm[kv + 1:] if p[2] < pos)
                assert n <= 63
                w.append("vmcnt(%d)" % n); vm = vm[kv + 1:]
            if kl is not None:
                if any(p[0].kind == "smem" for p in lg): kl = len(lg) - 1
                for k in range(kl + 1, len(lg)):
                    if lg[k][1] + cover <= at and lg[k][2] < pos: kl = k
                n = sum(1 for p in lg[kl + 1:] if p[2] < pos)
                while n > 15:
                    kl += 1; n -= 1
                w.append("lgkmcnt(%d)" % n); lg = lg[kl + 1:]
            out.insert(pos, I("s_waitcnt " + " ".join(w)))
            for p in lg + vm:
                if p[2] >= pos: p[2] += 1
            mpos = [q + 1 if q >= pos else q for q in mpos]
        if c.kind == "waitvm": continue
        out.append(c)
        if c.kind == "mfma": mpos.append(len(out) - 1); nm += 1
        if c.kind in ("ds_read", "ds_write", "smem"): lg.append([c, nm, len(out) - 1])
        if c.kind in ("vload", "vstore", "dma"):
            vm.append([c, nm, len(out) - 1])
            assert len(vm) <= 63, "vmcnt overflow at " + c.text
    return out, [p[0] for p in vm], [p[0] for p in lg]

def _cls(text):
    k = I(text).kind
    if k in ("label", "salu", "wait", "barrier", "nop", "waitvm", "smem", "branch"): return "s"
    if k in ("ds_read",): return "d"
    if k == "ds_write": return "m"
    if k == "trans": return "e"
    if k in ("dma", "vload", "vstore"): return "m"
    return "v"

class Op:
    _n = 0
    def __init__(self, text, cost=None, lo=0, hi=10**9, deps=(), tag=None, ahead=4, glue=False):
        ls = text if isinstance(text, list) else [text]
        self.glued = None
        if glue:
            self.glued = ls; ls = ["buffer_load_dword v0, v0, s[0:3], 0 offen"]
        ls = [l for l in ls if l.strip() != "s_nop 0"]
        deps = [d if isinstance(d, tuple) else (d, 0) for d in deps if d is not None]
        self.sub = []
        main = max([i for i, l in enumerate(ls) if _cls(l) == "m"], default=-1)
        prev = None
        for i, l in enumerate(ls[:-1]):
            o = Op(l, lo=max(0, lo - ahead) if i < main else lo, hi=hi + (2 if i > main >= 0 else 0), deps=(deps if prev is None else [Op._link(prev, l)]), tag=tag)
            self.sub += [o]; prev = o
        self.line = ls[-1]; self.cls = _cls(self.line)
        self.lo = lo; self.hi = hi + (2 if 0 <= main < len(ls) - 1 else 0)
        self.deps = deps if prev is None else [Op._link(prev, self.line)]
        self.gap = None; self.tag = tag; self.seq = Op._n; Op._n += 1
        self.cost = {"s": 4, "d": 4, "v": 4, "e": 8, "m": 12}[self.cls]
    @staticmethod
    def _link(prev, l):
        return (prev, 1 if (_cls(l) == "m" or prev.cls == "m") else 0)

_ORD = {"m": 0, "s": 1, "d": 2, "e": 3, "v": 3}
def gap_cycles(cl):
    t = 4; prev = "M"
    for c in cl:
        if c == "s": t += 4
        elif c == "m":
            if prev in ("v", "e"): t += 4
            t += 12
        elif c == "d":
            t = max(t, 8)
            if prev in ("v", "e"): t += 8
            t += 4
        else:
            t = max(t, 8) + (8 if c == "e" else 4)
        prev = c
    return max(16, t)

def schedule(ngaps, ops0, reserve=()):
    ops = []
    for o in ops0: ops += o.sub + [o]
    changed = True
    while changed:
        changed = False
        for o in ops:
            for d, dist in o.deps:
                if d.gap is None and d.hi > o.hi - dist:
                    d.hi = o.hi - dist; changed = True
                if o.lo < d.lo + dist and d.gap is None:
                    o.lo = d.lo + dist; changed = True
    gaps = [[] for _ in range(ngaps)]
    pending = sorted(ops, key=lambda o: (o.hi, o.seq))
    def order(lst):
        out = []
        rest = sorted(lst, key=lambda o: (_ORD[o.cls], o.pos))
        while rest:
            for o in rest:
                if all(d not in rest for d, _ in o.deps):
                    out.append(o); rest.remove(o); break
        return out
    for g in range(ngaps):
        progress = True
        while progress:
            progress = False
            for o in pending:
                if o.lo > g: continue
                if any(d.gap is None or d.gap + dist > g for d, dist in o.deps): continue
                o.pos = len(gaps[g])
                trial = order(gaps[g] + [o])
                fits = gap_cycles([x.cls for x in trial]) <= 16
                if fits or o.hi <= g or g == ngaps - 1:
                    o.gap = g; gaps[g] = trial; pending.remove(o); progress = True
                    break
    if pending:
        raise RuntimeError("unscheduled: %s" % [(o.line, o.lo, o.hi) for o in pending][:5])
    late = [(o.line, o.gap, o.hi) for o in ops if o.gap > o.hi]
    if late: raise RuntimeError("deadline missed: %s" % late[:5])
    return gaps

def weave(mfmas, ops, cap=8):
    gaps = schedule(len(mfmas), ops)
    out = []
    cyc = 0
    for g, m in enumerate(mfmas):
        out.append(I(m))
        for o in gaps[g]:
            for l in (o.glued or [o.line]): out.append(I(l, tag=o.tag))
        cyc += gap_cycles([o.cls for o in gaps[g]])
    return out, cyc

def model_cycles(S):
    cyc = 0; cur = None
    for i in S:
        if i.kind in ("label", "directive"): continue
        if i.kind == "mfma":
            if cur is not None: cyc += gap_cycles(cur)
            cur = []
        else:
            c = _cls(i.text)
            n = i.states() if i.kind == "nop" else 1
            if cur is None: cyc += {"s": 4, "d": 4, "v": 4, "e": 8, "m": 12}[c] * n
            else: cur += [c] * n
    if cur is not None: cyc += gap_cycles(cur)
    return cyc

def lines(txt, tag=None):
    return [I(l, tag=tag) for l in txt.strip("\n").split("\n") if l.strip() and not l.strip().startswith(";")]

def check_m0(stream, temps=(31, 40, 41, 42, 43, 62, 82)):
    last = {}
    for i in stream:
        if i.kind in ("dma", "vload", "vstore"):
            for r in i.rd:
                if r == ("m0", 0) or (r[0] == "s" and r[1] in temps):
                    w = last.get(r)
                    assert w is not None and w.tag == i.tag, ("scalar set-up mismatch", i.text, i.tag, w and (w.text, w.tag))
        for r in i.wr: last[r] = i

import os
STAMP = bool(os.environ.get("STAMP"))
STAMP_S0 = 64
class Stamps:
    def __init__(self): self.n = 0
    def line(self):
        n = self.n; self.n += 1
        return f"{os.environ.get('STAMPOP', 's_memrealtime')} s[{STAMP_S0+2*n}:{STAMP_S0+2*n+1}]"
    def dump(self, srd, sW, base, v0=250):
        l = ["s_waitcnt lgkmcnt(0)", "s_lshl_b32 s3, s2, 2", f"s_add_u32 s3, s3, s{sW}", "s_lshl_b32 s3, s3, 6", f"s_add_u32 s3, s3, {base}",
             f"v_mov_b32 v{v0}, 0"]
        for i in range(self.n):
            l += [f"v_mov_b32 v{v0+1}, s{STAMP_S0+2*i}", f"buffer_store_dword v{v0+1}, v{v0}, s[{srd}:{srd+3}], s3 offen offset:{4*i}", "s_nop 1"]
        return lines("\n".join(l))

def check_fresh(stream, regs_pred):
    pend = {}
    for i in stream:
        if i.kind == "mfma":
            for r in i.srcab: pend.pop(r, None)
        if i.kind in ("vload", "ds_read") and regs_pred(i):
            for r in i.wr:
                assert r not in pend, ("load overwritten before use", pend[r].text, i.text)
                pend[r] = i
    return pend
```

```python
from core import *
from layout import *

T_THR = 20.0
NEG = -1.0e30
vL16, vB0, vB1, vNEG, vM0, vM1 = 1, 2, 3, 4, 5, 6
vQa, vQb, vGa, vGb = 7, 8, 9, 10
vWr = lambda ct, win: 11 + win * 4 + ct
vT = [23, 24, 25, 26, 27]
ONES = 28
LACC = lambda qb: 32 + 4 * qb
NEGM = lambda qb: 48 + 4 * qb
SB = [64, 128]
KR = 192
O = lambda qb, db: (qb * 8 + db) * 4
Q = lambda qb, s: 128 + (qb * 4 + s) * 4
VR = 192
sW, sH, sI, sSL = 24, 25, 26, 27
sKs, sVs, sMa, sMb = 28, 29, 30, 31
sACT = [32, 33, 34, 35]
sXN = [36, 37, 38, 39]
sT = [40, 41, 42, 43]
sCnt, sWq, sWg, sW4k = 44, 45, 46, 47
sRet = 98
MASK = lambda kt, r: 64 + (kt * 4 + r) * 2
SK, SV, SWS, SWQ, SWG, SWU, SWO, SDB, sFl = 4, 8, 16, 48, 20, 52, 56, 96, 100
sTm0, sTsrc, sTdst = 88, 89, 90
vTr = 0

def stamp(vt=26):
    if not STAMP: return []
    return lines(f"""
{os.environ.get('STAMPOP', 's_memrealtime')} vcc
s_waitcnt lgkmcnt(0)
v_mov_b32 v{vt}, vcc_lo
buffer_store_dword v{vt}, off, s[{SWS}:{SWS+3}], s101
s_add_u32 s101, s101, 4
""")
def r4(f, r): return f"{f}[{r}:{r+3}]"
MF = "v_mfma_f32_16x16x32_bf16"

def tiles(ty):
    d = {}
    if ty[0] == "S":
        for qb in range(4):
            for kt in range(4):
                if ty == "Sd2" and qb == 0: continue
                m = kt if (ty == "Sd1" and qb == 0) or (ty == "Sd2" and qb == 1) else None
                d[(qb, kt)] = m
    else:
        for qb in (2, 3):
            for kt in range(8):
                if ty == "Rd" and qb == 2 and kt >= 4: continue
                m = None
                if ty == "Rd" and ((qb == 2) or (qb == 3 and kt >= 4)): m = kt % 4
                d[(qb, kt)] = m
    return d
def sreg(ty, par, qb, kt):
    ks = kt // 2
    G = qb * 2 + ks if ty[0] == "S" else (ks // 2) * 4 + (qb - 2) * 2 + ks % 2
    return SB[par] + G * 8 + (kt % 2) * 4
def sweeps(ty):
    if ty[0] == "S": return [(qb, qb, 0) for qb in range(4) if not (ty == "Sd2" and qb == 0)]
    return [(j, 2 + j % 2, j // 2) for j in range(4) if not (ty == "Rd" and j == 2)]

def dma_item(kind, slot_s, off, tag):
    srdn, src = (SK, sKs) if kind == "K" else (SV, sVs)
    out = []
    for j in range(4):
        l = []
        if j == 0: l += [f"s_add_u32 m0, s{slot_s}, {off}", "s_nop 0"]
        l.append(f"buffer_load_dwordx4 v{vL16}, s[{srdn}:{srdn+3}], s{src} offen offset:{j*1024}{SC1} lds")
        if j == 3: l.append(f"s_add_u32 s{src}, s{src}, 0x4000")
        out.append(l)
    return out

def qk_mfmas(nxt, pn, mf, czero=False):
    tl = tiles(nxt)
    nkt = 4 if nxt[0] == "S" else 8
    first = {}; last = {}; kuse = {}
    flip = 0
    for kt in range(nkt):
        qbs = [qb for qb in range(4) if (qb, kt) in tl]
        if kt % 2: qbs = qbs[::-1]
        for qb in qbs:
            d = sreg(nxt, pn, qb, kt)
            ss = [0, 1, 2, 3] if flip % 2 == 0 else [3, 2, 1, 0]
            flip += 1
            first[(qb, kt)] = len(mf)
            for n, s in enumerate(ss):
                if n: c = r4("v", d)
                elif tl[(qb, kt)] is not None: c = r4("v", d)
                else: c = "0" if czero else r4("v", NEGM(qb))
                k = KR + ((kt % 4) * 4 + s) * 4
                kuse.setdefault((kt, s), [len(mf), 0])[1] = len(mf)
                mf.append(f"{MF} {r4('v', d)}, {r4('v', k)}, {r4('a', Q(qb, s))}, {c}")
            last[(qb, kt)] = len(mf) - 1
    return tl, first, last, kuse

def mask_init(nxt, pn, tl, czero=False):
    out = []
    for (qb, kt), m in tl.items():
        if m is None: continue
        d = sreg(nxt, pn, qb, kt)
        for r in range(4):
            src = "0" if czero else f"v{NEGM(qb)}"
            out.append(((qb, kt), f"v_cndmask_b32 v{d+r}, {src}, v{vNEG}, s[{MASK(m, r)}:{MASK(m, r)+1}]"))
    full = tiles(nxt[0])
    absent = []
    for key in full:
        if key not in tl:
            d = sreg(nxt, pn, *key)
            absent += [f"v_mov_b32 v{d+r}, v{vNEG}" for r in range(4)]
    return out, absent

def body(cur, nxt, par, name, first_pv=False, hook=None):
    pn = 1 - par
    swap = cur[0] == "R" and par == 1
    B0, B1 = (vB1, vB0) if swap else (vB0, vB1)
    Ma, Mb = (sMb, sMa) if swap else (sMa, sMb)
    mf = []; ops = []; pre = []
    if nxt:
        tl, first, last, kuse = qk_mfmas(nxt, pn, mf)
    nA = len(mf)
    sw = sweeps(cur)
    puse = {}; vuse = {}; zs = set()
    flip = 0
    for n, (j, qb, vh) in enumerate(sw):
        if cur[0] == "S": dbs = range(8) if n % 2 == 0 else range(7, -1, -1)
        else: dbs = range(8) if j in (1, 2) else range(7, -1, -1)
        if cur == "Rd" and j == 3: dbs = range(8)
        for db in dbs:
            o = O(qb, db)
            for k2 in ((0, 1) if flip % 2 == 0 else (1, 0)):
                p = SB[par] + (2 * j + k2) * 8
                v = VR + (k2 * 8 + db) * 4
                puse.setdefault(2 * j + k2, len(mf))
                vuse.setdefault((vh, k2, db), [len(mf), 0])[1] = len(mf)
                z = first_pv and o not in zs; zs.add(o)
                mf.append(f"{MF} {r4('a', o)}, {r4('a', v)}, {r4('v', p)}, {'0' if z else r4('a', o)}")
            flip += 1
        for k2 in ((0, 1) if flip % 2 == 0 else (1, 0)):
            p = SB[par] + (2 * j + k2) * 8
            z = first_pv and ("l", qb) not in zs; zs.add(("l", qb))
            mf.append(f"{MF} {r4('v', LACC(qb))}, {r4('v', ONES)}, {r4('v', p)}, {'0' if z else r4('v', LACC(qb))}")
        flip += 1
    NG = len(mf)
    for n, (j, qb, vh) in enumerate(sw):
        for k2 in (0, 1):
            G = 2 * j + k2; b = SB[par] + G * 8
            dl = min(puse[2 * j], puse[2 * j + 1]) - 3
            if dl < 4:
                for i in range(8): pre.append(f"v_exp_f32 v{b+i}, v{b+i}")
                for i in range(4): pre.append(f"v_cvt_pk_bf16_f32 v{b+i}, v{b+2*i}, v{b+2*i+1}")
                continue
            pc = None
            for i in range(4):
                e0 = Op(f"v_exp_f32 v{b+2*i}, v{b+2*i}", 8); e1 = Op(f"v_exp_f32 v{b+2*i+1}, v{b+2*i+1}", 8)
                c = Op(f"v_cvt_pk_bf16_f32 v{b+i}, v{b+2*i}, v{b+2*i+1}", 4, hi=dl, deps=[(e0, 1), (e1, 1), pc])
                ops += [e0, e1, c]; pc = c
    vbase = 32768 + (16384 * par if cur[0] == "S" else 0)
    for (vh, k2, db), (fu, lu) in sorted(vuse.items(), key=lambda x: x[1][0]):
        ln = f"ds_read_b128 {r4('a', VR + (k2*8+db)*4)}, v{B0} offset:{vbase + vh*16384 + (k2*8+db)*1024}"
        if vh == 0:
            if nA == 0: pre.insert(0, ln) if False else pre.append(ln)
            else: ops.append(Op(ln, lo=max(0, fu - 44), hi=fu - 8))
        else:
            ops.append(Op(ln, lo=vuse[(0, k2, db)][1], hi=fu - 8))
    if nA == 0:
        pre = [l for l in pre if l.startswith("ds_")] + [l for l in pre if not l.startswith("ds_")]
    if nxt:
        if nxt[0] == "R":
            for kt in range(4, 8):
                for s in range(4):
                    fu = kuse[(kt, s)][0]
                    ops.append(Op(f"ds_read_b128 {r4('v', KR + ((kt%4)*4+s)*4)}, v{B1} offset:{16384 + ((kt%4)*4+s)*1024}", lo=kuse[(kt-4, s)][1], hi=fu - 8))
        if nxt != "Rd":
            if cur[0] == "S" and nxt[0] == "S": kb, ko = B1, 16384 * par
            else: kb, ko = B0, 0
            for f in range(16):
                ops.append(Op(f"ds_read_b128 {r4('v', KR + f*4)}, v{kb} offset:{ko + f*1024}", lo=nA + 2 + (f * (NG - nA - 20)) // 16, hi=NG - 10))
        mi, absent = mask_init(nxt, pn, tl)
        for key, ln in mi:
            if first[key] < 4: pre.append(ln)
            else: ops.append(Op(ln, lo=0, hi=first[key] - 3))
        for ln in absent: ops.append(Op(ln, lo=0, hi=NG - 1))
        regs = []
        for key in sorted(tl, key=lambda k: last[k]):
            d = sreg(nxt, pn, *key); regs += [(d + r, last[key]) for r in range(4)]
        pm = [None, None]; n = 0; i = 0
        while i < len(regs):
            m = (vM0, vM1)[n % 2]
            if n < 2:
                a, b, c = regs[i], regs[i+1], regs[i+2]; i += 3
                o = Op(f"v_max3_f32 v{m}, v{a[0]}, v{b[0]}, v{c[0]}", lo=c[1] + 8, hi=NG - 6)
            else:
                a, b = regs[i], regs[i+1]; i += 2
                o = Op(f"v_max3_f32 v{m}, v{a[0]}, v{b[0]}, v{m}", lo=b[1] + 8, hi=NG - 6, deps=[pm[n % 2]])
            pm[n % 2] = o; ops.append(o); n += 1
        fm = Op(f"v_max_f32 v{vM0}, v{vM0}, v{vM1}", hi=NG - 4, deps=pm); ops.append(fm)
        ops.append(Op(f"v_cmp_lt_f32 vcc, {f32(T_THR)}, v{vM0}", hi=NG - 2, deps=[fm]))
        items = []
        if cur[0] == "S":
            items = [("K", Ma, 16384 * par), ("V", Mb, 32768 + 16384 * par)]
            if nxt[0] == "R": items.append(("K", Mb, 0))
            endvm = 8 if nxt in ("S", "Sd1") else (4 if nxt == "Sd2" else 0)
            span = NG - 8 if endvm == 8 else (NG * 6) // 10
        else:
            items = [("K", Ma, 16384), ("V", Mb, 32768), ("V", Mb, 49152), ("K", Mb, 0)]
            if nxt == "Rd": items = items[1:3]
            endvm = 0; span = (NG * 6) // 10
        if nxt == "Rd" and cur[0] == "S": items = items[1:2]
        nd = 4 * len(items); prev = None; n = 0
        for it, (kind, ms, off) in enumerate(items):
            for l in dma_item(kind, ms, off, None):
                g = 1 + (n * span) // nd
                prev = Op(l, cost=8 + 4 * (len(l) > 1), lo=g, hi=g + 4, deps=[prev], tag=f"it{it}"); ops.append(prev); n += 1
        if cur[0] == "S" and par == 1:
            tog = [f"v_xor_b32 v{vB0}, 0x10000, v{vB0}", f"v_xor_b32 v{vB1}, 0x10000, v{vB1}",
                   f"s_xor_b32 s{sMa}, s{sMa}, 0x10000", f"s_xor_b32 s{sMb}, s{sMb}, 0x10000"]
            for t in tog: ops.append(Op(t, lo=NG - 3, hi=NG - 1))
    if hook: hook(pre, ops, NG)
    bodyI, cyc = weave(mf, ops)
    S = lines("\n".join(pre)) if pre else []
    S += bodyI
    if not nxt: return S + stamp()
    if nxt:
        fam = nxt[0]
        S += lines(f"""
s_cbranch_vccz {name}_ok
s_call_b64 s[{sRet}:{sRet+1}], rare_{fam}{pn}
{name}_ok:
s_waitcnt vmcnt({endvm}) lgkmcnt(0)
s_barrier
""")
    if not os.environ.get("PSTAMP"): S += stamp()
    check_m0(S)
    S, vm, lg = insert_waits(S)
    hz = []
    S = pad_hazards(S, hz)
    print(f"  body {name}: mfma {NG} model {cyc} final {model_cycles(S)} insts {len(S)} nops {len(hz)}")
    return S

def rowmax_lines(regs, t0, t1):
    l = [f"v_max3_f32 v{t0}, v{regs[0]}, v{regs[1]}, v{regs[2]}"]
    i = 3
    while i + 1 < len(regs):
        l.append(f"v_max3_f32 v{t0}, v{regs[i]}, v{regs[i+1]}, v{t0}"); i += 2
    if i < len(regs): l.append(f"v_max_f32 v{t0}, v{t0}, v{regs[i]}")
    l += [f"v_mov_b32 v{t1}, v{t0}", f"v_permlane16_swap_b32 v{t0}, v{t1}", f"v_max_f32 v{t0}, v{t0}, v{t1}",
          f"v_mov_b32 v{t1}, v{t0}", f"v_permlane32_swap_b32 v{t0}, v{t1}", f"v_max_f32 v{t0}, v{t0}, v{t1}"]
    return l

def qb_regs(fam, par, qb):
    return [sreg(fam, par, qb, kt) + r for kt in range(4 if fam == "S" else 8) for r in range(4)]

def rare(fam, par):
    l = [f"rare_{fam}{par}:", "s_nop 7", "s_nop 7"]
    t0, t1, t2 = vT[0], vT[1], vT[2]
    for qb in (range(4) if fam == "S" else (2, 3)):
        regs = qb_regs(fam, par, qb)
        l += rowmax_lines(regs, t0, t1)
        l += [f"v_max_f32 v{t0}, 0, v{t0}", f"v_exp_f32 v{t1}, -v{t0}"]
        l += [f"v_sub_f32 v{r}, v{r}, v{t0}" for r in regs]
        l += [f"v_sub_f32 v{NEGM(qb)+r}, v{NEGM(qb)+r}, v{t0}" for r in range(4)]
        l += [f"v_mul_f32 v{LACC(qb)+r}, v{LACC(qb)+r}, v{t1}" for r in range(4)]
        for a in range(O(qb, 0), O(qb, 0) + 32):
            l += [f"v_accvgpr_read_b32 v{t2}, a{a}", f"v_mul_f32 v{t2}, v{t2}, v{t1}", f"v_accvgpr_write_b32 a{a}, v{t2}"]
    l += ["s_nop 1", f"s_setpc_b64 s[{sRet}:{sRet+1}]"]
    return pad_hazards(lines("\n".join(l)))

def finalize(qbs, tpar):
    l = ["s_nop 7"]
    for n, qb in enumerate(qbs):
        l.append(f"v_rcp_f32 v{vT[n]}, v{LACC(qb)}")
    c = 0
    for n, qb in enumerate(qbs):
        for s in range(4):
            t = SB[tpar] + (c % 8) * 8; c += 1
            a0 = O(qb, 2 * s)
            l += [f"v_accvgpr_read_b32 v{t+i}, a{a0+i}" for i in range(8)]
            l += [f"v_mul_f32 v{t+i}, v{t+i}, v{vT[n]}" for i in range(8)]
            l += [f"v_cvt_pk_bf16_f32 v{t+i}, v{t+2*i}, v{t+2*i+1}" for i in range(4)]
            l += [f"s_add_u32 s{sT[c%4]}, s{sACT[qb]}, {s*4096}",
                  f"buffer_store_dwordx4 {r4('v', t)}, v{vL16}, s[{SWS}:{SWS+3}], s{sT[c%4]} offen sc1"]
    return pad_hazards(lines("\n".join(l)))

rQ = [64 + g for g in range(5)]; rG = [70 + g for g in range(5)]; rXo = [76 + g for g in range(5)]
def mask_lines():
    return [f"v_cmp_gt_i32 s[{MASK(kt,r)}:{MASK(kt,r)+1}], {16*kt+r}, v{vM0}" for kt in range(4) for r in range(4)]

AITEMS = [("K", sMa, 0), ("K", sMa, 16384), ("V", sMa, 32768), ("V", sMa, 49152), ("K", sMb, 0), ("K", sMb, 16384)]
def late_items():
    S = []
    for n, (kind, ms, off) in enumerate(AITEMS):
        for l in dma_item(kind, ms, off, None):
            for x in l: S.append(I(x, tag=f"A{n}"))
    S.append(I("@waitvm A0 A1")); S += lines("s_barrier")
    for f in range(16): S += lines(f"ds_read_b128 {r4('v', KR + f*4)}, v{vB0} offset:{f*1024}")
    return S

def first_tile(ty):
    mf = []; ops = []; pre = []
    tl, first, last, kuse = qk_mfmas(ty, 0, mf, czero=True)
    mi, absent = mask_init(ty, 0, tl, czero=True)
    pre += [ln for key, ln in mi]
    for kt in range(4):
        for s in range(4):
            f = kt * 4 + s
            ops.append(Op(f"ds_read_b128 {r4('v', KR + f*4)}, v{vB0} offset:{16384 + f*1024}", lo=min(63, kuse[(kt, s)][1]), hi=63))
    bodyI, cyc = weave(mf, ops)
    S = lines("\n".join(pre)) if pre else []
    S += bodyI
    return S

def init_max():
    l = []
    for qb in range(4):
        regs = qb_regs("S", 0, qb)
        t0, t1 = vT[qb % 2 * 2], vT[qb % 2 * 2 + 1]
        l += rowmax_lines(regs, t0, t1)
        l += [f"v_sub_f32 v{r}, v{r}, v{t0}" for r in regs]
        l += [f"v_sub_f32 v{NEGM(qb)+r}, 0, v{t0}" for r in range(4)]
    return lines("\n".join(l))

def transposer(name):
    S = []
    sN, sK0, sDst = 63, 56, 58
    vA, vS = vT[3], vT[1]
    S += lines(f"""
s_cmp_ge_u32 s{sN}, 27
s_cbranch_scc1 {name}_tdone
s_load_dwordx2 s[{SWG}:{SWG+1}], s[0:1], 72
s_lshl_b32 s{sK0}, s{sN}, 1
s_movk_i32 s{sDst}, 128
s_mov_b32 s{SWG+2}, {1728*1280}
s_waitcnt lgkmcnt(0)
s_add_u32 s{sDst}, s{sDst}, s{sK0}
s_mul_i32 s{sDst}, s{sDst}, 5120
s_mul_i32 s{sT[0]}, s{sW}, {2*NKS*5120}
s_add_u32 s{sDst}, s{sDst}, s{sT[0]}
s_add_u32 s{sDst}, s{sDst}, {WF}
s_mul_i32 s59, s{sK0}, 40960
s_mul_i32 s{sT[0]}, s{sW}, 10240
s_add_u32 s59, s59, s{sT[0]}
s_mov_b32 s62, s{sT[0]}
v_lshrrev_b32 v{vS}, 4, v{vL16}               ; lane
v_and_b32 v{vA}, 15, v{vS}
v_lshrrev_b32 v{vS}, 4, v{vS}                 ; g
v_lshrrev_b32 v{vT[2]}, 2, v{vA}              ; r'
v_lshl_add_u32 v{vS}, v{vS}, 2, v{vT[2]}      ; 4g+r'
v_mul_u32_u24 v{vS}, 1280, v{vS}
v_and_b32 v{vA}, 3, v{vA}
v_lshl_add_u32 v{vA}, v{vA}, 3, v{vS}
s_mul_i32 s{sT[0]}, s{sW}, 320
v_add_u32 v{vA}, s{sT[0]}, v{vA}
""")
    def load(it):
        out = []
        for j in range(10):
            if j % 4 == 0:
                out.append(I(f"s_add_u32 m0, s62, {(it % 4) * 40960 + j * 1024}", tag=f"T{it}"))
                out.append(I(f"s_add_u32 s{sT[1]}, s59, {it * 40960 + j * 1024}", tag=f"T{it}"))
            out.append(I(f"buffer_load_dwordx4 v{vL16}, s[{SWG}:{SWG+3}], s{sT[1]} offen offset:{(j%4)*1024} lds", tag=f"T{it}"))
        return out
    for it in range(2): S += load(it)
    for it in range(2):
        S.append(I(f"@waitvm T{it}")); S += lines("s_barrier")
        S += lines(f"v_add_u32 v{vS}, {(it % 4) * 40960}, v{vA}")
        base = 64 + (it % 2) * 40
        for c in range(10):
            S += lines(f"ds_read_b64_tr_b16 v[{base+4*c}:{base+4*c+1}], v{vS} offset:{c*32}\nds_read_b64_tr_b16 v[{base+4*c+2}:{base+4*c+3}], v{vS} offset:{c*32 + 16*1280}")
        S += lines(f"""
s_add_u32 s{sT[2]}, s{sDst}, {it*5120}
s_add_u32 s{sT[3]}, s{sDst}, {it*5120 + NKS*5120}
""")
        for c in range(10):
            nt = c % 5
            S += lines(f"buffer_store_dwordx4 {r4('v', base+4*c)}, v{vL16 if nt < 4 else vT[4]}, s[{SWS}:{SWS+3}], s{sT[2 + c//5]} offen offset:{(nt%4)*1024} sc1")
    S += lines("s_waitcnt lgkmcnt(0)\ns_barrier")
    check_m0(S)
    S, vm, lg = insert_waits(S)
    S += lines("s_waitcnt vmcnt(8)")
    S.append(I(f"{name}_tdone:"))
    return pad_hazards(S)
```

```python
XN  = 0x0000000
KF  = 0x0400000
VF  = 0x1400000
ACT = 0x2400000
WF  = 0x3C00000
FLG = 0x4370000
DBG = 0x4380000
DBG2 = 0x43C0000
WS_END = 0x4400000
NKS = 182
SCALE = 1.4426950408889634 / (128 ** 0.5)
import struct
def f32(x): return "0x%08x" % struct.unpack("<I", struct.pack("<f", x))[0]

import os
SC1 = " sc1" if os.environ.get("NOSC1") is None else ""
```

```python
from core import *
from layout import *
import k2 as C
from k2 import (r4, MF, vL16, vB0, vB1, vNEG, vM0, vM1, vQa, vQb, vGa, vGb, vWr, vT, ONES, LACC, NEGM, SB, KR, O, Q, VR,
                sW, sH, sI, sSL, sKs, sVs, sMa, sMb, sACT, sXN, sT, sCnt, sWq, sWg, sW4k, sRet, MASK, vTr,
                SK, SV, SWS, SWQ, SWG, SWU, SWO, SDB, sFl, sTm0, sTsrc, sTdst, dma_item, AITEMS, stamp, mask_lines)
NAME = "recurrent_scan__compressed_kv_cla__glu_gated_bilinear__prompt_kernel"
BIG = 0x7f000000
def srd(n, lo, hi, size):
    return f"s_mov_b32 s{n}, {lo}\ns_mov_b32 s{n+1}, {hi}\ns_mov_b32 s{n+2}, {size}\ns_mov_b32 s{n+3}, 0x20000"

sNon = 61
sKVf = 60
F_LN, F_KV, F_HW, F_CT = FLG, FLG + 0x1000, FLG + 0x4000, FLG + 0x5000
def publish(addr_lines, vt):
    return (addr_lines + [f"s_add_u32 s3, s3, s{sFl}", f"v_mov_b32 v{vt}, s{sNon}"],
            ["s_mov_b64 exec, 1", f"buffer_store_dword v{vt}, off, s[{SWS}:{SWS+3}], s3 sc1", "s_mov_b64 exec, -1"])
_np = [0]
def poll_load(vt, va, wide=False):
    return f"buffer_load_dwordx4 v[{vt}:{vt+3}], v{va}, s[{SWS}:{SWS+3}], 0 offen sc1" if wide else f"buffer_load_dword v{vt}, v{va}, s[{SWS}:{SWS+3}], 0 offen sc1"
def poll_check(vt, va, wide=False, load=None, chk=None):
    n = _np[0]; _np[0] += 1
    if chk is None:
        chk = [f"v_cmp_ne_u32 vcc, s{sNon}, v{vt}"]
        if wide:
            chk = [f"v_xor_b32 v{vt+i}, s{sNon}, v{vt+i}" for i in range(4)] + [f"v_or3_b32 v{vt}, v{vt}, v{vt+1}, v{vt+2}", f"v_or_b32 v{vt}, v{vt}, v{vt+3}", f"v_cmp_ne_u32 vcc, 0, v{vt}"]
    inl = chk + [f"s_cbranch_vccnz spin{n}", f"spun{n}:"]
    ool = [f"spin{n}:", "s_mov_b32 s3, 0", f"spin{n}l:", "s_sleep 16", load or poll_load(vt, va, wide), "s_add_u32 s3, s3, 1", "s_waitcnt vmcnt(0)"] + chk + \
          [f"s_cbranch_vccz spun{n}", "s_cmp_lt_u32 s3, 0x40000", f"s_cbranch_scc1 spin{n}l", f"s_branch spun{n}"]
    return inl, ool
OOL = []

def chain(ops, ls, lo, hi, dep=None, spread=0):
    pv = dep
    for n, x in enumerate(ls):
        t = x.text if isinstance(x, I) else x
        pv = Op(t, lo=lo + (n * spread) // max(1, len(ls)), hi=hi, deps=[pv]); ops.append(pv)
    return pv

XBUF = lambda g, qb, ks: 128 + ((g + 1) % 2) * 64 + (qb * 4 + ks) * 4
def xloads(g):
    out = []
    for qb in range(4):
        for ks in range(4):
            l = [f"buffer_load_dwordx4 {r4('a', XBUF(g, qb, ks))}, v{vL16}, s[{SWS}:{SWS+3}], s{sXN[qb]} offen offset:{ks*1024} sc1"]
            if ks == 3: l.append(f"s_add_u32 s{sXN[qb]}, s{sXN[qb]}, 0x1000")
            out.append(l)
    return out
_ts = [0]
def tmp():
    _ts[0] = (_ts[0] + 1) % 4
    return sT[_ts[0]]
def dma_unit(kind, g, u, L):
    out = []
    for j in range(4):
        t = tmp(); l = []
        if j == 0: l.append(f"s_add_u32 m0, s{sW4k}, {L*16384}")
        if kind == "Q":
            l.append(f"s_add_u32 s{t}, s{sWq}, {(128*g + 8*j)*8192 + u*128 - j*1024}")
            l.append(f"buffer_load_dwordx4 v{vQb if j%2 else vQa}, s[{SWQ}:{SWQ+3}], s{t} offen offset:{j*1024} lds")
        else:
            sn = SWG if u == 0 else SWU
            l.append(f"s_add_u32 s{t}, s{sWg}, {(128*g + 8*j)*3456 - j*1024}")
            l.append(f"buffer_load_dwordx4 v{vGb if j%2 else vGa}, s[{sn}:{sn+3}], s{t} offen offset:{j*1024} lds")
        out.append(l)
    return out
def trread(w, ct, addr):
    win, off = addr >> 16, addr & 0xffff
    return [f"ds_read_b64_tr_b16 v[{w}:{w+1}], v{vWr(ct, win)} offset:{off}",
            f"ds_read_b64_tr_b16 v[{w+2}:{w+3}], v{vWr(ct, win)} offset:{off+512}"]

def phase_a():
    S = []
    vXa, vXb = 2, 3
    vXr = [4, 5, 6, 0]
    vWa, vWb = vQa, vQb
    t0, t1, t2, t3, t4, t5 = 160, 161, 162, 163, 164, 165
    vLane = 166
    vLA = 23; LNR = [24, 26, 28, 30, 9]
    LNR = [24, 26, 28, 30, 158]
    ACC = [32, 96]
    WB = 160; NWB = 24; WOFF = 16
    aH, aKB, sXb, sWb, sM0x, sM0w = 25, 26, 27, 28, 29, 30
    sK = [84, 85, 86, 87]; sV = [88, 89, 90, 91]; sC = 44
    rX = [64 + c for c in range(8)]; rW = [72 + c for c in range(8)]
    S += lines(f"""
s_cmp_ge_u32 s2, 256
s_cbranch_scc1 kend
s_load_dwordx4 s[80:83], s[0:1], 0
s_load_dwordx2 s[8:9], s[0:1], 24
s_load_dwordx2 s[12:13], s[0:1], 32
s_load_dwordx2 s[{SWS}:{SWS+1}], s[0:1], 96
s_load_dwordx2 s[{SWQ}:{SWQ+1}], s[0:1], 16
s_load_dwordx2 s[{SWO}:{SWO+1}], s[0:1], 40
s_load_dwordx2 s[92:93], s[0:1], 56
s_load_dwordx2 s[{SWU}:{SWU+1}], s[0:1], 64
s_load_dwordx2 s[{SDB}:{SDB+1}], s[0:1], 88
s_getpc_b64 s[94:95]
s_memrealtime s[60:61]
v_lshrrev_b32 v{t0}, 6, v0
v_and_b32 v{vLane}, 63, v0
s_bfe_u32 s{aH}, s2, 0x20001
s_lshl_b32 s{aH}, s{aH}, 3
s_bfe_u32 s{sT[0]}, s2, 0x30003
v_readfirstlane_b32 s{sW}, v{t0}
s_add_u32 s{aH}, s{aH}, s{sT[0]}
s_and_b32 s{aKB}, s2, 1
s_lshl_b32 s{aKB}, s{aKB}, 2
s_lshr_b32 s{sT[2]}, s2, 6
s_add_u32 s{aKB}, s{aKB}, s{sT[2]}
s_lshl_b32 s{sT[2]}, s{sT[2]}, 1
s_add_u32 s3, s{sT[0]}, s{sT[2]}             ; rotation
v_lshlrev_b32 v{vL16}, 4, v{vLane}
s_lshr_b32 s{sT[1]}, s2, 3
s_min_u32 s{sT[1]}, s{sT[1]}, 27
s_lshl_b32 s{sT[1]}, s{sT[1]}, 12
v_lshlrev_b32 v{t5}, 4, v0
v_add_u32 v{t5}, s{sT[1]}, v{t5}
v_lshrrev_b32 v{t0}, 3, v{vLane}
v_and_b32 v{t1}, 7, v{vLane}
v_lshrrev_b32 v{t2}, 1, v{t0}
v_xor_b32 v{t3}, v{t1}, v{t2}
v_lshlrev_b32 v{t3}, 4, v{t3}
v_lshl_add_u32 v{vXa}, v{t0}, 10, v{t3}
v_xor_b32 v{vXb}, 64, v{vXa}
v_and_b32 v{t2}, 1, v{t2}
v_lshlrev_b32 v{t2}, 1, v{t2}
v_xor_b32 v{t3}, v{t1}, v{t2}
v_lshlrev_b32 v{t3}, 4, v{t3}
v_lshl_add_u32 v{vWa}, v{t0}, 13, v{t3}
v_xor_b32 v{vWb}, 64, v{vWa}
v_mul_u32_u24 v{t0}, 3456, v{t0}
v_add_u32 v{vGa}, v{t0}, v{t3}
v_xor_b32 v{t3}, 64, v{t3}
v_add_u32 v{vGb}, v{t0}, v{t3}
s_lshl_b32 s{sXb}, s{aKB}, 18
s_lshl_b32 s{sT[0]}, s{sW}, 16
s_add_u32 s{sXb}, s{sXb}, s{sT[0]}
s_lshl_b32 s{sWb}, s{aH}, 8
s_lshl_b32 s{sT[0]}, s{sW}, 17
s_add_u32 s{sWb}, s{sWb}, s{sT[0]}
s_lshl_b32 s{sM0x}, s{sW}, 13
s_lshl_b32 s{sM0w}, s{sW}, 11
s_mov_b32 s6, {2048*1024}
s_mov_b32 s7, 0x20000
s_mov_b32 s10, {512*8192}
s_mov_b32 s11, 0x20000
""")
    def rot(c):
        return lines(f"""
s_add_u32 s{sT[0]}, s3, {c}
s_and_b32 s{sT[0]}, s{sT[0]}, 7
s_lshl_b32 s{rX[c]}, s{sT[0]}, 7
s_add_u32 s{rX[c]}, s{rX[c]}, s{sXb}
s_lshl_b32 s{rW[c]}, s{sT[0]}, 19
s_add_u32 s{rW[c]}, s{rW[c]}, s{sWb}
""")
    def dmaX(kc, j):
        t = tmp(); l = []
        if j % 4 == 0: l.append(f"s_add_u32 m0, s{sM0x}, {(kc % 3) * 32768 + j * 1024}")
        l.append(f"s_add_u32 s{t}, s{rX[kc]}, {j * 8192 - (j % 4) * 1024}")
        l.append(f"buffer_load_dwordx4 v{vXb if j % 2 else vXa}, s[4:7], s{t} offen offset:{(j % 4) * 1024} lds")
        return l
    SLOTBASE = [6 * 16384, 6 * 16384, 0, 4 * 16384]
    def dmaW(slot, p, odd):
        t = tmp(); srdn = 8 if slot < 2 else 12; l = []
        if odd == 0: l.append(f"s_add_u32 m0, s{sM0w}, {SLOTBASE[slot] + p * 8192}")
        l.append(f"s_add_u32 s{t}, s{rW[p]}, {(8 * odd) * 8192 + (slot % 2) * 128 - odd * 1024}")
        l.append(f"buffer_load_dwordx4 v{vWb if odd else vWa}, s[{srdn}:{srdn+3}], s{t} offen offset:{odd * 1024} lds")
        return l
    def emit(ls, tag):
        for x in ls: S.append(I(x, tag=tag))
    S += rot(0) + rot(1)
    S += lines("s_waitcnt lgkmcnt(0)\ns_mov_b32 s4, s82\ns_mov_b32 s5, s83")
    for odd in range(2): emit(dmaW(0, 0, odd), "W0_0")
    for j in range(8): emit(dmaX(0, j), "X0")
    S += lines(f"global_load_dwordx4 v[252:255], v{t5}, s[94:95]")
    S += lines(f"""
s_mov_b32 s14, {512*8192}
s_mov_b32 s15, 0x20000
s_add_u32 s{SWS}, s{SWS}, {int(os.environ.get("WSOFF", "0"), 0)}
s_addc_u32 s{SWS+1}, s{SWS+1}, 0
s_mov_b32 s{SWS+2}, {WS_END}
s_mov_b32 s{SWS+3}, 0x20000
s_mov_b32 s{SWQ+2}, {640*8192}
s_mov_b32 s{SWQ+3}, 0x20000
s_mov_b32 s{SWO+2}, {4096*1280}
s_mov_b32 s{SWO+3}, 0x20000
s_mov_b32 s{SWU+2}, {640*3456}
s_mov_b32 s{SWU+3}, 0x20000
s_mov_b32 s{SDB+2}, 256
s_mov_b32 s{SDB+3}, 0x20000
{srd(20, "s80", "s81", 2048*1280)}
s_cmp_eq_u32 s{sW}, 0
s_cselect_b32 s{sFl}, 0, {BIG}
s_or_b32 s{sT[0]}, s60, 1
v_mov_b32 v{t4}, s{sT[0]}
s_lshl_b32 s{sT[0]}, s2, 8
s_add_u32 s62, s{sT[0]}, s{sFl}
s_mov_b64 exec, 1
buffer_store_dword v{t4}, off, s[{SDB}:{SDB+3}], s62 sc1
s_mov_b64 exec, -1
s_lshl_b32 s{sKVf}, s{aH}, 8
s_lshl_b32 s{sT[0]}, s{aKB}, 2
s_add_u32 s{sKVf}, s{sKVf}, s{sT[0]}
s_add_u32 s{sKVf}, s{sKVf}, {F_KV}
s_lshl_b32 s{sT[0]}, s2, 3
s_lshl_b32 s{sT[1]}, s{sW}, 1
s_add_u32 s{sT[0]}, s{sT[0]}, s{sT[1]}
v_lshrrev_b32 v{t0}, 5, v{vLane}
v_add_u32 v{t0}, s{sT[0]}, v{t0}             ; token
v_and_b32 v{t1}, 31, v{vLane}                ; c
v_mul_u32_u24 v{t2}, 1280, v{t0}
v_lshl_add_u32 v{t2}, v{t1}, 3, v{t2}
v_lshrrev_b32 v{vLA}, 4, v{t0}
v_mul_u32_u24 v{vLA}, 20, v{vLA}
v_lshrrev_b32 v{t3}, 3, v{t1}
v_add_lshl_u32 v{vLA}, v{vLA}, v{t3}, 10
v_bfe_u32 v{t3}, v{t1}, 1, 2
v_lshl_add_u32 v{vLA}, v{t3}, 8, v{vLA}
v_and_b32 v{t3}, 15, v{t0}
v_lshl_add_u32 v{vLA}, v{t3}, 4, v{vLA}
v_and_b32 v{t3}, 1, v{t1}
v_lshl_add_u32 v{vLA}, v{t3}, 3, v{vLA}
""")
    if STAMP:
        S += lines(f"s_lshl_b32 s101, s2, 2\ns_add_u32 s101, s101, s{sW}\ns_lshl_b32 s101, s101, 8\ns_add_u32 s101, s101, {DBG}")
        S += stamp(t4)
    for c in range(2, 8): S += rot(c)
    S += lines(f"""
v_and_b32 v{t0}, 15, v{vLane}                ; r
v_lshrrev_b32 v{t1}, 4, v{vLane}             ; g
v_lshrrev_b32 v{t3}, 1, v{t0}
v_xor_b32 v{t3}, v{t3}, v{t1}
v_lshlrev_b32 v{t3}, 4, v{t3}
v_lshl_add_u32 v{t3}, v{t0}, 7, v{t3}
v_add_u32 v{vXr[0]}, s{sM0x}, v{t3}
v_xor_b32 v{vXr[1]}, 64, v{vXr[0]}
v_add_u32 v{vXr[2]}, 0x10000, v{vXr[0]}
v_add_u32 v{vXr[3]}, 0x10000, v{vXr[1]}
v_lshrrev_b32 v{t3}, 2, v{t0}                ; r'
v_and_b32 v{t4}, 3, v{t0}                    ; c'
v_lshl_add_u32 v{t5}, v{t1}, 3, v{t3}
v_lshlrev_b32 v{t5}, 7, v{t5}
v_lshl_add_u32 v{t5}, v{t4}, 3, v{t5}
v_lshrrev_b32 v{t3}, 1, v{t3}
v_and_b32 v{t1}, 1, v{t1}
v_lshl_or_b32 v{t3}, v{t1}, 1, v{t3}         ; f
""")
    for ct in range(4):
        S += lines(f"""
v_xor_b32 v{t4}, {ct}, v{t3}
v_lshl_add_u32 v{vWr(ct,0)}, v{t4}, 5, v{t5}
v_add_u32 v{vWr(ct,1)}, 0x10000, v{vWr(ct,0)}
v_add_u32 v{vWr(ct,2)}, 0x20000, v{vWr(ct,0)}
""")
    S += lines(f"""
s_lshl_b32 s{sT[0]}, s{aH}, 19
s_lshl_b32 s{sT[1]}, s{aKB}, 16
s_add_u32 s{sT[0]}, s{sT[0]}, s{sT[1]}
s_lshl_b32 s{sT[1]}, s{sW}, 14
s_add_u32 s{sT[0]}, s{sT[0]}, s{sT[1]}
s_mov_b32 s{sC}, {f32(SCALE)}
""")
    for r in range(4):
        S += lines(f"s_add_u32 s{sK[r]}, s{sT[0]}, {KF + r * 4096}\ns_add_u32 s{sV[r]}, s{sT[0]}, {VF + r * 4096}")
    for odd in range(2): emit(dmaW(0, 1, odd), "W0_1")
    for j in range(8): emit(dmaX(1, j), "X1")
    for j in range(5):
        S += lines(f"buffer_load_dwordx2 v[{96+2*j}:{97+2*j}], v{t2}, s[20:23], 0 offen offset:{256*j}")
    S += lines(f"s_mov_b32 s{SWG}, s92\ns_mov_b32 s{SWG+1}, s93\ns_mov_b32 s{SWG+2}, {640*3456}")
    LN = []
    E = [108 + i for i in range(20)]; D = [134 + i for i in range(20)]
    a0, a1, u0, mu = 128, 129, 130, 131
    def allreduce(r, t):
        return [f"v_add_f32_dpp v{r}, v{r}, v{r} row_ror:{k} row_mask:0xf bank_mask:0xf" for k in (8, 4, 2, 1)] + \
               [f"v_mov_b32 v{t}, v{r}", f"v_permlane16_swap_b32 v{r}, v{t}", f"v_add_f32 v{r}, v{r}, v{t}"]
    def unpack(): return sum(([f"v_lshlrev_b32 v{E[2*j]}, 16, v{96+j}", f"v_and_b32 v{E[2*j+1]}, 0xffff0000, v{96+j}"] for j in range(10)), [])
    LN += unpack()
    LN += [f"v_add_f32 v{a0}, v{E[0]}, v{E[1]}", f"v_add_f32 v{a1}, v{E[2]}, v{E[3]}"]
    for j in range(4, 20, 2): LN += [f"v_add_f32 v{a0}, v{a0}, v{E[j]}", f"v_add_f32 v{a1}, v{a1}, v{E[j+1]}"]
    LN += [f"v_add_f32 v{a0}, v{a0}, v{a1}"] + allreduce(a0, u0) + [f"v_mul_f32 v{mu}, {f32(1.0/640)}, v{a0}"]
    LN += [f"v_sub_f32 v{D[j]}, v{E[j]}, v{mu}" for j in range(20)]
    LN += [f"v_mul_f32 v{a0}, v{D[0]}, v{D[0]}", f"v_mul_f32 v{a1}, v{D[1]}, v{D[1]}"]
    for j in range(2, 20, 2): LN += [f"v_fmac_f32 v{a0}, v{D[j]}, v{D[j]}", f"v_fmac_f32 v{a1}, v{D[j+1]}, v{D[j+1]}"]
    LN += [f"v_add_f32 v{a0}, v{a0}, v{a1}"] + allreduce(a0, u0)
    LN += [f"v_mul_f32 v{a0}, {f32(1.0/640)}, v{a0}", f"v_cvt_pk_bf16_f32 v{a0}, v{a0}, v{mu}", f"v_and_b32 v{mu}, 0xffff0000, v{a0}",
           f"v_lshlrev_b32 v{a0}, 16, v{a0}", f"v_add_f32 v{a0}, {f32(1e-5)}, v{a0}", f"v_cvt_pk_bf16_f32 v{a0}, v{a0}, v{a0}",
           f"v_lshlrev_b32 v{a0}, 16, v{a0}", f"v_sqrt_f32 v{a0}, v{a0}", f"v_cvt_pk_bf16_f32 v{a0}, v{a0}, v{a0}",
           f"v_lshlrev_b32 v{a0}, 16, v{a0}", f"v_rcp_f32 v{a1}, v{a0}"]
    LN += [f"v_sub_f32 v{D[j]}, v{E[j]}, v{mu}" for j in range(20)]
    LN += [f"v_cvt_pk_bf16_f32 v{96+j}, v{D[2*j]}, v{D[2*j+1]}" for j in range(10)]
    LN += unpack()
    for j in range(20):
        LN += [f"v_mul_f32 v{D[j]}, v{E[j]}, v{a1}", f"v_fma_f32 v{E[j]}, -v{D[j]}, v{a0}, v{E[j]}", f"v_fmac_f32 v{D[j]}, v{E[j]}, v{a1}"]
    LN += [f"v_cvt_pk_bf16_f32 v{LNR[j//2] + j%2}, v{D[2*j]}, v{D[2*j+1]}" for j in range(10)]
    mf = []; ops = []
    X = lambda rt, ks: r4("a", ((1 - ks // 8) * 32 + rt * 8 + ks % 8) * 4)
    acc = lambda st, ct, rt: ACC[st] + (ct * 4 + rt) * 4
    wreg = lambda f: WB + ((f + WOFF) % NWB) * 4
    frags = []; lastw = {}; started = set(); flip = [0]
    def group(slot, ct, kss):
        fidx = {}
        for ks in kss:
            fidx[ks] = len(frags); frags.append([slot, ct, ks, None, None])
        rts = range(4) if (flip[0] // 4) % 2 == 0 else range(3, -1, -1)
        for rt in rts:
            order = kss if flip[0] % 2 == 0 else kss[::-1]
            flip[0] += 1
            d = acc(slot % 2, ct, rt)
            for ks in order:
                f = fidx[ks]
                c = r4("v", d) if (slot, ct, rt) in started else "0"
                started.add((slot, ct, rt))
                wf = r4("v", wreg(f))
                a_, b_ = (wf, X(rt, ks)) if slot < 2 else (X(rt, ks), wf)
                if frags[f][3] is None: frags[f][3] = len(mf)
                frags[f][4] = len(mf); lastw[(slot, ct, rt)] = len(mf)
                mf.append(f"{MF} {r4('v', d)}, {a_}, {b_}, {c}")
    for kc in range(8):
        for ct in range(4): group(0, ct, [2 * kc, 2 * kc + 1])
    for kq in range(4):
        for ct in range(4): group(1, ct, list(range(4 * kq, 4 * kq + 4)))
    for slot in (2, 3):
        for ct in range(4):
            for kh in range(2): group(slot, ct, list(range(8 * kh, 8 * kh + 8)))
    NG = len(mf)
    syncs = {}
    for kc in range(1, 8): syncs[("A", kc)] = (32 * kc - 14, [f"X{kc}", f"W0_{kc}"])
    for kq in range(4): syncs[("B", kq)] = (256 + 64 * kq - 18, [f"W1_{2*kq}", f"W1_{2*kq+1}"])
    syncs[("C", 0)] = (512 - 30, [f"W2_{p}" for p in range(8)])
    syncs[("L", 0)] = (600, ["ln"])
    syncs[("D", 0)] = (768 - 30, [f"W3_{p}" for p in range(8)])
    syncs[("E", 0)] = (800, [])
    syncs[("P", 0)] = (NG - 44, ["P0u0", "P0u1"])
    sop = {}
    for k, (g, tags) in syncs.items():
        sop[k] = Op((["@waitvm " + " ".join(tags)] if tags else []) + ["s_barrier"], lo=g, hi=g + 1); ops.append(sop[k])
        if STAMP and k in (("A", 4), ("B", 0), ("C", 0), ("D", 0)): ops.append(Op([x.text for x in stamp(vM1 if k[0] in "CD" else 157)], lo=g, hi=g + 3, deps=[sop[k]], glue=True))
    def xreads(kc):
        r = []
        for rt in range(4):
            for s_ in range(2):
                reg = kc % 3
                r.append(f"ds_read_b128 {X(rt, 2*kc+s_)}, v{vXr[s_ + (2 if reg == 2 else 0)]} offset:{(reg % 2) * 32768 + rt * 2048}")
        return r
    wreads = lambda f: trread(wreg(f), frags[f][1], SLOTBASE[frags[f][0]] + frags[f][2] * 4096)
    S.append(I("@waitvm X0 W0_0")); S += lines("s_barrier")
    S += stamp(157)
    pre_f = [f for f in range(len(frags)) if frags[f][3] < 12]
    for f in pre_f[:2]: S += lines("\n".join(wreads(f)))
    S += lines("\n".join(xreads(0)))
    for f in pre_f[2:]: S += lines("\n".join(wreads(f)))
    for kc in range(1, 8):
        for n, r in enumerate(xreads(kc)): ops.append(Op(r, lo=0, hi=32 * kc - 7 + n // 2, deps=[sop[("A", kc)]]))
    for f, (slot, ct, ks, fu, lu) in enumerate(frags):
        if f in pre_f: continue
        dep = sop.get({0: ("A", ks // 2), 1: ("B", ks // 4), 2: ("C", 0), 3: ("D", 0)}[slot])
        lo = max(frags[f - NWB][4] if f >= NWB else 0, fu - 40)
        for r in wreads(f): ops.append(Op(r, lo=lo, hi=fu - 7, deps=[dep]))
    plan = []
    for odd in range(2): plan.append((1 + 2 * odd, dmaW(0, 2, odd), "W0_2", []))
    for j in range(8): plan.append((5 + 2 * j, dmaX(2, j), "X2", []))
    for kc in range(3, 8):
        g = 32 * (kc - 3) + (22 if kc == 3 else 10)
        for odd in range(2): plan.append((g + 2 * odd, dmaW(0, kc, odd), f"W0_{kc}", []))
        for j in range(8): plan.append((g + 4 + 2 * j, dmaX(kc, j), f"X{kc}", []))
    Bt = {0: 164, 1: 174, 2: 184, 3: 194, 4: 214, 5: 224, 6: 244, 7: 306}
    Bdep = {4: ("A", 7), 5: ("A", 7), 6: ("B", 0), 7: ("B", 1)}
    for p in range(8):
        for odd in range(2): plan.append((Bt[p] + 4 * odd, dmaW(1, p, odd), f"W1_{p}", [sop[Bdep[p]]] if p in Bdep else []))
    Ct = [254, 266, 278, 290, 318, 334, 350, 366]
    for p in range(8):
        for odd in range(2): plan.append((Ct[p] + 5 * odd, dmaW(2, p, odd), f"W2_{p}", [sop[("B", 0)]]))
    Dt = [384, 402, 420, 440, 460, 490, 520, 550]
    for p in range(8):
        for odd in range(2): plan.append((Dt[p] + 8 * odd, dmaW(3, p, odd), f"W3_{p}", [sop[("B", 3)]] if p >= 4 else []))
    lnl = chain(ops, LN, 24, 236, spread=196)
    pv = lnl
    for n, j in enumerate([4, 0, 1, 2, 3]):
        g = 240 if n == 0 else 270 + 56 * n
        pv = Op([f"s_movk_i32 s31, {XN + j*4096}", f"buffer_store_dwordx2 v[{LNR[j]}:{LNR[j]+1}], v{vLA}, s[{SWS}:{SWS+3}], s31 offen sc1"], lo=g, hi=g + 10, deps=[pv], tag="ln"); ops.append(pv)
    nl = f"buffer_load_dword v2, off, s[{SDB}:{SDB+3}], 0 sc1"
    o1 = Op(nl, lo=500, hi=510); ops.append(o1)
    inl, ool = poll_check(2, 0, load=nl, chk=["v_cmp_eq_u32 vcc, 0, v2"]); OOL.extend(ool)
    o2 = Op(inl + [f"v_readfirstlane_b32 s{sNon}, v2"], lo=570, hi=576, deps=[o1], glue=True); ops.append(o2)
    su, gl = publish(["s_lshr_b32 s3, s2, 4", "s_lshl_b32 s3, s3, 8", "s_and_b32 s92, s2, 15", "s_lshl_b32 s92, s92, 2", "s_add_u32 s3, s3, s92", f"s_add_u32 s3, s3, {F_LN}"], 24)
    pv = chain(ops, su, 580, 604, dep=(o2, 2))
    ops.append(Op(gl, lo=604, hi=610, deps=[pv, sop[("L", 0)]], glue=True))
    u = [92, 93, 94, 95]; w0, w1, w2, w3 = 25, 26, 27, 28
    BS = f"""
v_lshrrev_b32 v{w0}, 4, v{vL16}              ; lane
s_and_b32 s{u[2]}, s2, 7
s_lshl_b32 s{sH}, s{u[2]}, 2
s_bfe_u32 s{u[1]}, s2, 0x20003
s_add_u32 s{sH}, s{sH}, s{u[1]}
s_lshr_b32 s{sI}, s2, 5
s_mul_i32 s{sSL}, s{u[2]}, 3
s_add_u32 s{sSL}, s{sSL}, s{u[1]}
s_add_u32 s{u[3]}, s{u[2]}, s{sI}
s_and_b32 s{u[3]}, s{u[3]}, 7
s_add_u32 s{u[0]}, s{u[3]}, 19
s_mul_i32 s63, s{sI}, 5
s_add_u32 s63, s63, s{u[3]}
@glue s_cmp_eq_u32 s{u[1]}, 3|s_cselect_b32 s{sSL}, s{u[0]}, s{sSL}|s_cselect_b32 s62, s{u[3]}, 7
s_lshl_b32 s{sW4k}, s{sW}, 12
s_lshl_b32 s{sWq}, s{sH}, 8
s_lshl_b32 s{u[0]}, s{sW}, 18
s_add_u32 s{sWq}, s{sWq}, s{u[0]}
s_lshl_b32 s{sWg}, s{sSL}, 7
s_mul_i32 s{u[0]}, s{sW}, {32*3456}
s_add_u32 s{sWg}, s{sWg}, s{u[0]}
s_sub_u32 s{u[1]}, 15, s{sI}
s_lshl_b32 s{u[2]}, s{sW}, 10
s_lshl_b32 s{u[3]}, s{sH}, 14
s_add_u32 s{u[2]}, s{u[2]}, s{u[3]}
s_add_u32 s{u[2]}, s{u[2]}, {ACT}
"""
    for qb in range(4):
        blk = sI if qb < 2 else u[1]
        BS += f"""s_lshl_b32 s{u[0]}, s{blk}, 1
s_add_u32 s{u[0]}, s{u[0]}, {qb % 2}
s_mul_i32 s{sACT[qb]}, s{u[0]}, {NKS*4096}
s_add_u32 s{sACT[qb]}, s{sACT[qb]}, s{u[2]}
s_lshl_b32 s{u[0]}, s{u[0]}, 2
s_add_u32 s{u[0]}, s{u[0]}, s{sW}
s_mul_i32 s{sXN[qb]}, s{u[0]}, 20480
"""
    BS += f"""s_lshl_b32 s{sSL}, s{sSL}, 13
s_add_u32 s{sSL}, s{sSL}, {128*4096}
s_sub_u32 s{sSL}, s{sSL}, s{u[3]}
s_lshl_b32 s{u[0]}, s{sH}, 19
s_add_u32 s{u[2]}, s{u[0]}, {KF}
@glue s_add_u32 s{SK}, s{SWS}, s{u[2]}|s_addc_u32 s{SK+1}, s{SWS+1}, 0
s_add_u32 s{u[2]}, s{u[0]}, {VF}
@glue s_add_u32 s{SV}, s{SWS}, s{u[2]}|s_addc_u32 s{SV+1}, s{SWS+1}, 0
s_add_u32 s{u[1]}, s{u[1]}, 1
s_lshl_b32 s{SK+2}, s{u[1]}, 15
s_mov_b32 s{SV+2}, s{SK+2}
s_mov_b32 s{sKs}, s{sW4k}
s_mov_b32 s{sVs}, s{sW4k}
s_mov_b32 s{sMb}, s{sW4k}
s_add_u32 s{sMa}, s{sW4k}, 0x10000
v_mov_b32 v{vB1}, v{vL16}
v_add_u32 v{vB0}, 0x10000, v{vL16}
v_mov_b32 v{vNEG}, {f32(C.NEG)}
v_and_b32 v{w1}, 15, v{w0}
v_lshrrev_b32 v{w2}, 4, v{w0}
v_lshlrev_b32 v{w2}, 2, v{w2}
s_lshl_b32 s{u[0]}, s{sW}, 4
v_add_u32 v{vM0}, s{u[0]}, v{w1}
v_sub_u32 v{vM0}, v{vM0}, v{w2}
v_lshrrev_b32 v{w3}, 2, v{w1}
v_add_u32 v{w3}, v{w2}, v{w3}
v_mul_u32_u24 v{w3}, 640, v{w3}
v_and_b32 v{w1}, 3, v{w1}
v_lshl_add_u32 v{w3}, v{w1}, 3, v{w3}
s_mul_i32 s{u[0]}, s{sW}, 160
s_add_u32 s{u[0]}, s{u[0]}, 0x20000
v_add_u32 v{vTr}, s{u[0]}, v{w3}
v_and_b32 v{w1}, 15, v{w0}
v_lshlrev_b32 v{w1}, 2, v{w1}
v_bfe_u32 v{w2}, v{w0}, 4, 1
s_lshl_b32 s{u[0]}, s{sI}, 1
s_sub_u32 s{u[0]}, 15, s{u[0]}
v_mul_u32_u24 v{w2}, s{u[0]}, v{w2}
v_add_u32 v{w2}, s{sI}, v{w2}
v_lshl_add_u32 v{w1}, v{w2}, 8, v{w1}
v_add_u32 v{w1}, {F_LN}, v{w1}
v_and_b32 v{vT[0]}, 7, v{w0}
v_lshlrev_b32 v{vT[0]}, 2, v{vT[0]}
s_lshl_b32 s{u[0]}, s{sH}, 8
s_add_u32 s{u[0]}, s{u[0]}, {F_KV}
v_add_u32 v{vT[0]}, s{u[0]}, v{vT[0]}
"""
    pv = None
    bl = [x for x in BS.split("\n") if x.strip()]
    for n, x in enumerate(bl):
        lo = 614 + (n * 130) // len(bl)
        if x.startswith("@glue"): pv = Op(x[6:].split("|"), lo=lo, hi=780, deps=[pv], glue=True)
        else: pv = Op(x, lo=lo, hi=780, deps=[pv])
        ops.append(pv)
    bsu = pv
    e = [92, 93, 94, 95]; y0, y1, y2 = 3, 4, 5
    TS = f"""
v_lshrrev_b32 v{y0}, 4, v{vL16}
s_lshr_b32 s{e[0]}, s2, 5
s_mul_i32 s{e[1]}, s{e[0]}, 80
s_mul_i32 s{e[2]}, s{sW}, 20
s_add_u32 s{e[1]}, s{e[1]}, s{e[2]}
v_min_u32 v{y1}, 39, v{y0}
v_lshrrev_b32 v{y2}, 1, v{y1}
v_add_u32 v{y2}, s{e[1]}, v{y2}
v_lshlrev_b32 v{y2}, 13, v{y2}
v_and_b32 v{y1}, 1, v{y1}
v_lshl_add_u32 v{y1}, v{y1}, 7, v{y2}
v_min_u32 v{y2}, 19, v{y0}
v_add_u32 v{y2}, s{e[1]}, v{y2}
v_mul_u32_u24 v{y2}, 3456, v{y2}
s_and_b32 s{e[1]}, s2, 7
s_bfe_u32 s{e[2]}, s2, 0x20003
s_add_u32 s{e[0]}, s{e[0]}, s{e[1]}
s_and_b32 s{e[0]}, s{e[0]}, 7
s_add_u32 s{e[0]}, s{e[0]}, 19
s_mul_i32 s{e[3]}, s{e[1]}, 3
s_add_u32 s{e[3]}, s{e[3]}, s{e[2]}
@glue s_cmp_eq_u32 s{e[2]}, 3|s_cselect_b32 s{e[3]}, s{e[0]}, s{e[3]}
s_lshl_b32 s{e[3]}, s{e[3]}, 7
s_lshl_b32 s{e[1]}, s{e[1]}, 2
s_add_u32 s{e[1]}, s{e[1]}, s{e[2]}
s_lshl_b32 s{e[1]}, s{e[1]}, 8
"""
    pv = None
    for n, x in enumerate([x for x in TS.split("\n") if x.strip()]):
        if x.startswith("@glue"): pv = Op(x[6:].split("|"), lo=270 + 2 * n, hi=350, deps=[pv], glue=True)
        else: pv = Op(x, lo=270 + 2 * n, hi=350, deps=[pv])
        ops.append(pv)
    TG = int(os.environ.get("TG", "572"))
    for n, l in enumerate([f"buffer_load_dword v{y0}, v{y1}, s[{SWQ}:{SWQ+3}], s{e[1]} offen", f"buffer_load_dword v{y0}, v{y2}, s[{SWG}:{SWG+3}], s{e[3]} offen",
                           f"buffer_load_dword v{y0}, v{y2}, s[{SWU}:{SWU+3}], s{e[3]} offen"]):
        pv = Op(l.replace(f"dword v{y0},", f"dword v{(29, 30, 31)[n]},"), lo=TG + 4 * n, hi=TG + 4 * n + 8, deps=[pv]); ops.append(pv)
    for uu in range(2):
        for j, l in enumerate(dma_unit("Q", 0, uu, uu)): plan.append((810 + 40 * uu + 9 * j, l, f"P0u{uu}", [bsu, sop[("E", 0)]]))
    pl = Op(poll_load(24, w1), lo=790, hi=800, deps=[bsu]); ops.append(pl)
    inl, ool = poll_check(24, w1); OOL.extend(ool)
    pc = Op(inl, lo=850, hi=856, deps=[pl], glue=True); ops.append(pc)
    xt = [f"s_bfe_u32 s92, s2, 0x20003", f"v_lshlrev_b32 v{w2}, 3, v{vL16}",
          f"@glue s_cmp_eq_u32 s92, 1|s_cselect_b32 s93, s{sXN[1]}, s{sXN[0]}|s_cmp_eq_u32 s92, 2|s_cselect_b32 s93, s{sXN[2]}, s93|s_cmp_eq_u32 s92, 3|s_cselect_b32 s93, s{sXN[3]}, s93"]
    pv = bsu
    for x in xt:
        pv = Op(x[6:].split("|") if x.startswith("@glue") else x, lo=800, hi=850, deps=[pv], glue=x.startswith("@glue")); ops.append(pv)
    ops.append(Op(f"buffer_load_dword v24, v{w2}, s[{SWS}:{SWS+3}], s93 offen sc1", lo=858, hi=866, deps=[pv, pc]))
    pv = pc
    for n, l in enumerate(xloads(0)):
        pv = Op(l[0:1], lo=NG - 33 + 2 * n, hi=NG - 1, deps=[pv]); ops.append(pv)
    late = [f"s_add_u32 s{sXN[qb]}, s{sXN[qb]}, 0x1000" for qb in range(4)]
    for f in range(8):
        for r in trread(KR + f * 4, f // 4, (f % 4) * 4096): ops.append(Op(r, lo=NG - 42, hi=NG - 1, deps=[sop[("P", 0)]]))
    plan.sort(key=lambda x: x[0])
    prev = None
    for g, ls, tag, deps in plan:
        prev = Op(ls, lo=g, hi=g + 8, deps=list(deps) + [prev], tag=tag); ops.append(prev)
    stores = []
    for slot in (0, 1):
        for cp in range(2):
            for rt in range(4):
                e, o = acc(slot, 2 * cp, rt), acc(slot, 2 * cp + 1, rt)
                ready = max(lastw[(slot, 2*cp, rt)], lastw[(slot, 2*cp+1, rt)]) + 6
                stores.append((ready, 512 + 256 * slot + 128 * cp - 4, e, o, True, f"buffer_store_dwordx4 {r4('v', e)}, v{vL16}, s[{SWS}:{SWS+3}], s{sK[rt]} offen offset:{(2*slot+cp)*1024} sc1"))
    for slot in (2, 3):
        for ct in range(4):
            for rp in range(2):
                e, o = acc(slot % 2, ct, 2 * rp), acc(slot % 2, ct, 2 * rp + 1)
                ready = max(lastw[(slot, ct, 2*rp)], lastw[(slot, ct, 2*rp+1)]) + 6
                stores.append((ready, 10**6, e, o, False, f"buffer_store_dwordx4 {r4('v', e)}, v{vL16}, s[{SWS}:{SWS+3}], s{sV[rp*2 + slot-2]} offen offset:{ct*1024} sc1"))
    stores.sort(key=lambda s: s[0])
    t = 250; tail = []
    for ready, dl, e, o, scale, sto in stores:
        t = max(t + 23, ready + 8)
        body = []
        if scale: body += [f"v_mul_f32 v{r}, s{sC}, v{r}" for r in list(range(e, e+4)) + list(range(o, o+4))]
        body += [f"v_cvt_pk_bf16_f32 v{e}, v{e}, v{e+1}", f"v_cvt_pk_bf16_f32 v{e+1}, v{e+2}, v{e+3}",
                 f"v_cvt_pk_bf16_f32 v{e+2}, v{o}, v{o+1}", f"v_cvt_pk_bf16_f32 v{e+3}, v{o+2}, v{o+3}"]
        if t >= NG - 40:
            tail.append((e, body, sto)); continue
        assert t <= dl, (t, dl)
        p = chain(ops, body, max(ready, t - 12), t)
        ops.append(Op(sto, lo=t, hi=min(dl, t + 6), deps=[(p, 1)]))
    body, cyc = weave(mf, ops)
    S += body
    S += lines("\n".join(late))
    print("phase A model", cyc, "tail stores", [(e) for e, _, _ in tail])
    return S, tail

def phase_b(gu, atail):
    S = []
    if gu: pairs = [("Q", 0), ("GU", 0), ("Q", 1), ("GU", 1), ("Q", 2), ("GU", 2), ("GU", 3), ("GU", 4), ("Q", 3), ("Q", 4)]
    else: pairs = [("Q", g) for g in range(5)]
    NP = len(pairs)
    slot = lambda p: p % 4
    mf = []; ops = []
    frags = []; started = set(); lastw = {}; firstw = {}
    flip = 0; xlast = {}
    for p, (kind, g) in enumerate(pairs):
        for u in range(2):
            for ct in range(4):
                fidx = [len(frags) + k for k in range(4)]
                for ks in range(4): frags.append([p, u, ct, ks, None, None])
                for qb in (range(4) if (flip // 4) % 2 == 0 else range(3, -1, -1)):
                    dn = ((u * 4 + ct) * 4 + qb) * 4
                    d = r4("v", 64 + dn) if kind == "Q" else r4("a", dn)
                    firstw.setdefault(d, len(mf))
                    for ks in ((0, 1, 2, 3) if flip % 2 == 0 else (3, 2, 1, 0)):
                        f = fidx[ks]
                        c = d if d in started else "0"
                        started.add(d)
                        if frags[f][4] is None: frags[f][4] = len(mf)
                        frags[f][5] = len(mf); lastw[(kind, u, ct, qb)] = len(mf); xlast[g] = len(mf)
                        mf.append(f"{MF} {d}, {r4('v', KR + (f % 16) * 4)}, {r4('a', XBUF(g, qb, ks))}, {c}")
                    flip += 1
    NG = len(mf)
    pT = 6 if gu else 3
    sop = {}
    for p in range(1, NP):
        g = 128 * p - 22
        sop[p] = Op([f"@waitvm P{p}u0 P{p}u1" + (" T" if p == pT else ""), "s_barrier"], lo=g, hi=g + 1); ops.append(sop[p])
        if STAMP and os.environ.get("PSTAMP"): ops.append(Op([x.text for x in stamp(vT[3])], lo=g, hi=g + 3, deps=[sop[p]], glue=True))
    for f in range(8, len(frags)):
        p, u, ct, ks, fu, lu = frags[f]
        lo = max(frags[f - 16][5] if f >= 16 else 0, fu - 36)
        for r in trread(KR + (f % 16) * 4, ct, (slot(p) * 2 + u) * 16384 + ks * 4096): ops.append(Op(r, lo=lo, hi=fu - 7, deps=[sop.get(p)]))
    pv = None
    for n, (e, body, sto) in enumerate(atail):
        dl = min(firstw[r4("v", e)], firstw[r4("v", e + 4)]) - 4
        p_ = chain(ops, body, 8, dl - 2, dep=pv)
        pv = Op(sto, lo=10 + 14 * n, hi=dl, deps=[(p_, 1)], tag="kv"); ops.append(pv)
    lastkv = pv
    sA = Op(["s_barrier"], lo=30, hi=31); ops.append(sA)
    plan = []
    for p in range(1, NP):
        if p == 1: g0, stp = 1, 5
        elif p == 2: g0, stp = 56, 8
        else: g0, stp = 128 * (p - 2) + 2, 13
        n = 0
        for u in range(2):
            for l in dma_unit(pairs[p][0], pairs[p][1], u, slot(p) * 2 + u):
                plan.append((g0 + stp * n, l, f"P{p}u{u}", [sop[p - 2]] if p >= 4 else ([sA, lastkv] if p >= 2 else []))); n += 1
    xneed = {}
    for p, (kind, g) in enumerate(pairs): xneed.setdefault(g, 128 * p)
    prev = None
    for g in range(1, 5):
        g0 = (xlast[g - 2] + 4) if g >= 2 else 3
        win = min(xneed[g] - 50 - g0, 190)
        for n, l in enumerate(xloads(g)):
            t = g0 + (win * n) // 16
            prev = Op(l, lo=t, hi=t + 12, deps=[prev]); ops.append(prev)
    su, gl = publish([f"s_mov_b32 s3, s{sKVf}"], 62)
    pv = chain(ops, su, 200, 240)
    ops.append(Op(gl, lo=236, hi=250, deps=[pv, sop[2]], glue=True))
    LS = f"""
s_mul_i32 s{sTm0}, s{sW}, 5120
s_add_u32 s{sTm0}, s{sTm0}, 0x20000
s_lshr_b32 s92, s2, 1
s_and_b32 s93, s2, 1
s_mul_i32 s{sTsrc}, s92, 40960
s_mul_i32 s94, s93, 640
s_add_u32 s{sTsrc}, s{sTsrc}, s94
s_lshl_b32 s93, s93, 2
s_add_u32 s93, s93, s{sW}
s_mul_i32 s93, s93, {NKS}
s_add_u32 s93, s93, s92
s_mul_i32 s{sTdst}, s93, 5120
s_add_u32 s{sTdst}, s{sTdst}, {WF}
s_mul_i32 s92, s{sW}, 320
v_lshrrev_b32 v{vM1}, 4, v{vL16}
v_add_u32 v{vM1}, s92, v{vM1}
v_add_u32 v{vT[4]}, 0x1000, v{vL16}
""" + "\n".join(f"v_mov_b32 v{ONES+r}, 0x3f803f80" for r in range(4))
    lsu = chain(ops, [x for x in LS.split("\n") if x.strip()], 90, 170, dep=lastkv, spread=60)
    if gu:
        pl = Op(poll_load(vT[1], vT[0]), lo=NG - 340, hi=NG - 330); ops.append(pl)
        inl, ool = poll_check(vT[1], vT[0]); OOL.extend(ool)
        pc = Op(inl, lo=NG - 274, hi=NG - 270, deps=[pl], glue=True); ops.append(pc)
        sk = Op(["@waitvm A0 A1", "s_barrier"], lo=NG - 44, hi=NG - 43); ops.append(sk)
        at = [(NG - 266, sop[NP - 2]), (NG - 226, sop[NP - 2]), (NG - 144, sop[NP - 1]), (NG - 104, sop[NP - 1]), (NG - 40, sk), (NG - 26, sk)]
        for n, (kind, ms, off) in enumerate(AITEMS):
            g0, dep = at[n]
            for j, l in enumerate(dma_item(kind, ms, off, None)): plan.append((g0 + (9 if n < 4 else 3) * j, l, f"A{n}", [dep, pc]))
    wt = [f"v_lshrrev_b32 v60, 4, v{vL16}", "v_min_u32 v60, 39, v60", "v_mul_u32_u24 v61, 52, v60", "v_lshrrev_b32 v61, 8, v61", "v_mul_u32_u24 v61, 640, v61",
          "v_lshl_add_u32 v60, v60, 7, v61", f"s_mul_i32 s92, s{sW}, {8*1280}", f"s_add_u32 s92, s92, s{sTsrc}"]
    pv = chain(ops, wt, 150, 190, dep=lsu)
    ops.append(Op(f"buffer_load_dword v61, v60, s[{SWO}:{SWO+3}], s92 offen", lo=170, hi=200, deps=[(pv, 1)]))
    gT = 128 * (3 if gu else 1) + 110
    for j in range(5):
        t = 32 + j
        l = [f"v_add_u32 v{t}, {j*64}, v{vM1}", f"v_mul_u32_u24 v{t+8}, 1639, v{t}", f"v_lshrrev_b32 v{t+8}, 16, v{t+8}",
             f"v_mul_u32_u24 v{t+8}, 640, v{t+8}", f"v_lshl_add_u32 v{t}, v{t}, 4, v{t+8}"]
        pv = chain(ops, l, gT - 60, gT - 4, dep=lsu)
        plan.append((gT + 3 * j, [f"s_add_u32 m0, s{sTm0}, {j*1024}", f"buffer_load_dwordx4 v{t}, s[{SWO}:{SWO+3}], s{sTsrc} offen lds"], "T", [pv]))
    for nt in range(5):
        t = 32 + 4 * nt
        r0 = Op(f"ds_read_b64_tr_b16 v[{t}:{t+1}], v{vTr} offset:{nt*32}", lo=128 * pT, hi=128 * pT + 60, deps=[sop[pT]])
        r1 = Op(f"ds_read_b64_tr_b16 v[{t+2}:{t+3}], v{vTr} offset:{nt*32 + 16*640}", lo=128 * pT, hi=128 * pT + 60, deps=[sop[pT]])
        so = Op(f"buffer_store_dwordx4 {r4('v', t)}, v{vL16 if nt < 4 else vT[4]}, s[{SWS}:{SWS+3}], s{sTdst} offen offset:{(nt%4)*1024} sc1",
                lo=128 * pT + 30 + 16 * nt, hi=128 * pT + 120, deps=[(r0, 8), (r1, 8)])
        ops += [r0, r1, so]
    for n, x in enumerate(mask_lines()): ops.append(Op(x, lo=NG - 100 + 2 * n, hi=NG - 1))
    hs = []
    if gu:
        t0 = 128 * 8 + 8; n = 0
        for fp in range(2):
            for qb in range(4):
                t = 32 + (n % 2) * 16
                ga = [((0 * 4 + 2 * fp + e) * 4 + qb) * 4 + r for e in range(2) for r in range(4)]
                ua = [((1 * 4 + 2 * fp + e) * 4 + qb) * 4 + r for e in range(2) for r in range(4)]
                ls = [f"v_accvgpr_read_b32 v{t+i}, a{ga[i]}" for i in range(8)] + [f"v_accvgpr_read_b32 v{t+8+i}, a{ua[i]}" for i in range(8)]
                ls += [f"v_mul_f32 v{t+i}, v{t+i}, v{t+8+i}" for i in range(8)]
                ls += [f"v_cvt_pk_bf16_f32 v{t+i}, v{t+2*i}, v{t+2*i+1}" for i in range(4)]
                g0 = t0 + 20 * n
                pv = chain(ops, ls, g0, g0 + 30, dep=(hs[-2], 1) if len(hs) >= 2 else None)
                so = Op([f"s_add_u32 s62, s{sACT[qb]}, s{sSL}", f"buffer_store_dwordx4 {r4('v', t)}, v{vL16 if fp == 0 else vT[4]}, s[{SWS}:{SWS+3}], s62 offen sc1"],
                        lo=g0, hi=g0 + 36, deps=[pv, hs[-1] if hs else None], tag=f"H{n}"); ops.append(so); hs.append(so)
                n += 1
    plan.sort(key=lambda x: x[0])
    prev = None
    for g, l, tag, deps in plan:
        prev = Op(l, lo=g, hi=g + 12, deps=deps + [prev], tag=tag); ops.append(prev)
    tail = []
    for s in range(4):
        u, cp = s // 2, s % 2
        for qb in range(4):
            e = 64 + ((u * 4 + 2 * cp) * 4 + qb) * 4; o = e + 16
            ready = max(lastw[("Q", u, 2*cp, qb)], lastw[("Q", u, 2*cp+1, qb)]) + 8
            ls = [f"v_cvt_pk_bf16_f32 v{e}, v{e}, v{e+1}", f"v_cvt_pk_bf16_f32 v{e+1}, v{e+2}, v{e+3}",
                  f"v_cvt_pk_bf16_f32 v{e+2}, v{o}, v{o+1}", f"v_cvt_pk_bf16_f32 v{e+3}, v{o+2}, v{o+3}"]
            ls += [f"v_accvgpr_write_b32 a{Q(qb, s)+i}, v{e+i}" for i in range(4)]
            if ready > NG - 8: tail += ls; continue
            chain(ops, ls, ready, NG - 1)
    nf = len(frags); ktail = []
    for f in range(16 if gu else 0):
        lu = max(frags[x][5] for x in range(nf - 16, nf) if x % 16 == f)
        ln = f"ds_read_b128 {r4('v', KR + f*4)}, v{vB0} offset:{f*1024}"
        if lu >= NG - 2: ktail.append(ln)
        else: ops.append(Op(ln, lo=lu, hi=NG - 1, deps=[sk]))
    bodyI, cyc = weave(mf, ops)
    S += bodyI
    S += lines("\n".join(ktail + tail))
    S += stamp(vT[3])
    print(f"phase B gu={gu}: mfma {NG} model {cyc}")
    return S

dTG, dCT, dA, dB, dAd, dBd, dAx, dBx = 64, 65, 66, 67, 68, 69, 70, 71
dU = [72, 73, 74, 75]
SX, SOUT = 76, 80
vL16b, vX, vWb1, vRd, vWb2, vPa, vPm, vPv = 2, 3, 7, 8, 9, 4, 5, 6
XR = 10; ACCS = 24; ACCB = 104
SLOTS = [("a", r) for r in range(128, 192, 4)] + [("a", r) for r in range(0, 64, 4)] + [("v", r) for r in range(192, 256, 4)] + \
        [("a", r) for r in range(192, 256, 4)]
NBUF = 3
def dbuf(n, i):
    f, r = SLOTS[(n % NBUF) * 18 + i]
    return r4(f, r)
_dt = [0]
def dloads(n):
    out = []
    for kk in range(2):
        q = 2 * n + kk
        ta, tb = sT[_dt[0]], sT[_dt[0] + 1]; _dt[0] ^= 2
        pre = []
        if q == 13: ta, tb = dAx, dBx
        elif q < 14: pre = [f"s_add_u32 s{ta}, s{dAd}, {q*4096}", f"s_add_u32 s{tb}, s{dBd}, {q*5120}"]
        else: pre = [f"s_add_u32 s{ta}, s{dA}, {(q-14)*4096}", f"s_add_u32 s{tb}, s{dB}, {(q-14)*5120}"]
        ls = [f"buffer_load_dwordx4 {dbuf(n, kk*9+i)}, v{vL16}, s[{SWS}:{SWS+3}], s{ta} offen offset:{i*1024} sc1" for i in range(4)]
        ls += [f"buffer_load_dwordx4 {dbuf(n, kk*9+4+i)}, v{vL16 if i < 4 else vT[4]}, s[{SWS}:{SWS+3}], s{tb} offen offset:{(i%4)*1024} sc1" for i in range(5)]
        out += [((pre if i == 0 else []) + [l], f"q{q}") for i, l in enumerate(ls)]
    return out

def d_hook(pre, ops, NG):
    pre[:0] = [f"s_load_dwordx2 s[{SX}:{SX+1}], s[0:1], 0", f"s_load_dwordx2 s[{SOUT}:{SOUT+1}], s[0:1], 80",
               f"v_add_u32 v{vPa}, {F_HW}, v{vL16}", poll_load(8, vPa, True)]
    su = f"""
s_lshr_b32 s{dU[0]}, s2, 3
s_bfe_u32 s{dTG}, s2, 0x20001
s_lshl_b32 s{dTG}, s{dTG}, 3
s_lshr_b32 s{dU[1]}, s{dU[0]}, 2
s_add_u32 s{dTG}, s{dTG}, s{dU[1]}
s_and_b32 s{dCT}, s2, 1
s_lshl_b32 s{dCT}, s{dCT}, 2
s_and_b32 s{dU[1]}, s{dU[0]}, 3
s_add_u32 s{dCT}, s{dCT}, s{dU[1]}
s_mul_i32 s{dA}, s{dTG}, {NKS*4096}
s_add_u32 s{dA}, s{dA}, {ACT}
s_mul_i32 s{dB}, s{dCT}, {NKS*5120}
s_add_u32 s{dB}, s{dB}, {WF}
s_mul_i32 s{dU[2]}, s{sW}, 14
s_cmp_eq_u32 s{sW}, 3
s_cselect_b32 s{dU[2]}, 41, s{dU[2]}
s_add_u32 s{dU[2]}, s{dU[2]}, 128
s_lshl_b32 s{dAd}, s{dU[2]}, 12
s_add_u32 s{dAd}, s{dAd}, s{dA}
s_mul_i32 s{dBd}, s{dU[2]}, 5120
s_add_u32 s{dBd}, s{dBd}, s{dB}
"""
    sl = [x for x in su.split("\n") if x.strip()]
    k = next(i for i, l in enumerate(pre) if l.startswith("v_exp"))
    rest = pre[k:]; del pre[k:]
    while sl or rest:
        if rest: pre.append(rest.pop(0))
        if sl: pre.append(sl.pop(0))
    inl, ool = poll_check(8, vPa, True); OOL.extend(ool)
    pc = Op(inl, lo=4, hi=6, glue=True); ops.append(pc)
    pv = pc
    for i, (l, tg) in enumerate(dloads(0)):
        pv = Op(l, lo=8 + (i * 5) // 2, hi=NG - 1, deps=[pv], tag=tg); ops.append(pv)

def phase_d():
    S = []
    NGRP = 23
    mf = []; ops = []
    started = set(); flip = 0
    for n in range(NGRP):
        base = ACCB if n < 7 else ACCS
        for tt in range(4):
            for nt in (range(5) if tt % 2 == 0 else range(4, -1, -1)):
                d = base + (tt * 5 + nt) * 4
                for kk in ((0, 1) if flip % 2 == 0 else (1, 0)):
                    c = r4("v", d) if d in started else "0"
                    started.add(d)
                    mf.append(f"{MF} {r4('v', d)}, {dbuf(n, kk*9+4+nt)}, {dbuf(n, kk*9+tt)}, {c}")
                flip += 1
    NG = len(mf)
    pv = None; sts = []
    rc = [Op(f"v_rcp_f32 v{vT[n]}, v{LACC(qb)}", lo=3, hi=5) for n, qb in enumerate((2, 3))]; ops += rc
    c = 0
    for n, qb in enumerate((2, 3)):
        for s in range(4):
            t = 64 + (c % 5) * 8
            a0 = O(qb, 2 * s)
            ls = [f"v_accvgpr_read_b32 v{t+i}, a{a0+i}" for i in range(8)] + [f"v_mul_f32 v{t+i}, v{t+i}, v{vT[n]}" for i in range(8)]
            ls += [f"v_cvt_pk_bf16_f32 v{t+i}, v{t+2*i}, v{t+2*i+1}" for i in range(4)]
            pv = chain(ops, ls, 6, 12 + 6 * c, dep=pv if c else (rc[1], 1))
            so = Op([f"s_add_u32 s62, s{sACT[qb]}, {s*4096}", f"buffer_store_dwordx4 {r4('v', t)}, v{vL16}, s[{SWS}:{SWS+3}], s62 offen sc1"],
                    lo=6, hi=14 + 6 * c, deps=[pv, sts[-1] if sts else None], tag="ctx" if c == 7 else f"c{c}"); ops.append(so); sts.append(so)
            c += 1
    sc = Op(["@waitvm ctx", "s_barrier"], lo=84, hi=85, deps=[sts[-1]]); ops.append(sc)
    su, gl = publish(["s_and_b32 s3, s2, 31", "s_lshl_b32 s3, s3, 2", f"s_lshl_b32 s{dU[3]}, s{sI}, 8", f"s_add_u32 s3, s3, s{dU[3]}", f"s_add_u32 s3, s3, {F_CT}"], vPv)
    pp = chain(ops, su, 60, 84)
    pub = Op(gl, lo=86, hi=88, deps=[pp, sc], glue=True); ops.append(pub)
    su = f"""
s_add_u32 s{dAx}, s{dAd}, {13*4096}
s_add_u32 s{dBx}, s{dBd}, {13*5120}
@glue s_cmp_ge_u32 s{sW}, 2|s_cselect_b32 s{dAx}, {BIG}, s{dAx}|s_cselect_b32 s{dBx}, {BIG}, s{dBx}
s_lshl_b32 s{dU[2]}, s{sW}, 17
s_add_u32 s{dA}, s{dA}, s{dU[2]}
s_mul_i32 s{dU[2]}, s{sW}, {32*5120}
s_add_u32 s{dB}, s{dB}, s{dU[2]}
s_mov_b32 s{SX+2}, {2048*1280}
s_mov_b32 s{SX+3}, 0x20000
s_mov_b32 s{SOUT+2}, {2048*1280}
s_mov_b32 s{SOUT+3}, 0x20000
v_bfe_u32 v20, v{vL16}, 4, 4
v_lshrrev_b32 v21, 8, v{vL16}
s_lshl_b32 s{dU[0]}, s{dTG}, 6
s_lshl_b32 s{dU[1]}, s{sW}, 4
s_add_u32 s{dU[0]}, s{dU[0]}, s{dU[1]}
v_add_u32 v20, s{dU[0]}, v20
v_mul_u32_u24 v{vX}, 1280, v20
v_lshl_add_u32 v{vX}, v21, 3, v{vX}
s_mul_i32 s{dU[0]}, s{dCT}, 160
v_add_u32 v{vX}, s{dU[0]}, v{vX}
s_mul_i32 s{dU[0]}, s{sW}, 5120
v_add_u32 v{vWb1}, s{dU[0]}, v{vL16}
v_add_u32 v{vWb2}, 40960, v{vWb1}
s_mul_i32 s{dU[0]}, s{sW}, 20480
v_add_u32 v{vRd}, s{dU[0]}, v{vL16}
v_mov_b32 v{vL16b}, v{vT[4]}
s_lshr_b32 s{dU[0]}, s{dTG}, 1
s_sub_u32 s{dU[1]}, 15, s{dU[0]}
s_min_u32 s{dU[0]}, s{dU[0]}, s{dU[1]}
s_lshl_b32 s{dU[0]}, s{dU[0]}, 8
s_add_u32 s{dU[0]}, s{dU[0]}, {F_CT}
v_bfe_u32 v20, v{vL16}, 2, 7
v_add_u32 v{vPa}, s{dU[0]}, v20
"""
    pv = None
    for n, x in enumerate([x for x in su.split("\n") if x.strip()]):
        if x.startswith("@glue"): pv = Op(x[6:].split("|"), lo=2 + 2 * n, hi=130, deps=[pv], glue=True)
        else: pv = Op(x, lo=2 + 2 * n, hi=130, deps=[pv])
        ops.append(pv)
    dsu = pv
    pl = Op(poll_load(vPv, vPa), lo=170, hi=176, deps=[pub, dsu]); ops.append(pl)
    inl, ool = poll_check(vPv, vPa); OOL.extend(ool)
    pc = Op(inl, lo=196, hi=199, deps=[pl], glue=True); ops.append(pc)
    prevl = None
    for n in range(1, NGRP):
        g0 = 0 if n == 1 else 40 * (n - 2)
        for i, (l, tg) in enumerate(dloads(n)):
            if n >= 5: l = [x.replace(f"v{vT[4]},", f"v{vL16b},") for x in l]
            t = (1 + i) if n == 1 else (20 + i if n == 2 else g0 + 1 + 2 * i)
            deps = [prevl] + ([dsu] if n in (5, 6) and i == 0 else []) + ([pc] if n == 7 and i == 0 else [])
            prevl = Op(l, lo=t, hi=min(t + 30, 40 * n - 22 + i) if n <= 4 else t + 6, deps=deps, tag=tg); ops.append(prevl)
    px = dsu
    for nt in range(5):
        px = Op(f"buffer_load_dwordx2 v[{XR+2*nt}:{XR+2*nt+1}], v{vX}, s[{SX}:{SX+3}], 0 offen offset:{nt*32}", lo=300 + 40 * nt + 38, hi=300 + 40 * nt + 44, deps=[px]); ops.append(px)
    g0 = 40 * 7 + 8
    prev = None
    for tt in range(4):
        for nt in range(5):
            d = ACCB + (tt * 5 + nt) * 4
            prev = Op(f"ds_write_b128 v{vWb1 if tt < 2 else vWb2}, {r4('v', d)} offset:{(tt%2)*20480 + nt*1024}", lo=g0 + 4*(tt*5+nt) + 2, hi=g0 + 110, deps=[prev]); ops.append(prev)
    bar = Op(["s_waitcnt lgkmcnt(0)", "s_barrier"], lo=g0 + 120, hi=g0 + 124, deps=[prev]); ops.append(bar)
    for w in range(4):
        for nt in range(5):
            d = ACCB + (w * 5 + nt) * 4
            prev = Op(f"ds_read_b128 {r4('v', d)}, v{vRd} offset:{w*5120 + nt*1024}", lo=g0 + 125 + 2*(w*5+nt), hi=g0 + 200, deps=[bar]); ops.append(prev)
    V = []
    for i in range(20): V += [f"v_add_f32 v{ACCB+i}, v{ACCB+i}, v{ACCB+i+20}", f"v_add_f32 v{ACCB+i+40}, v{ACCB+i+40}, v{ACCB+i+60}"]
    V += [f"v_add_f32 v{ACCB+i}, v{ACCB+i}, v{ACCB+i+40}" for i in range(20)]
    rnd = lambda b: sum(([f"v_cvt_pk_bf16_f32 v{b+i+20}, v{b+i}, v{b+i+1}", f"v_lshlrev_b32 v{b+i}, 16, v{b+i+20}", f"v_and_b32 v{b+i+1}, 0xffff0000, v{b+i+20}"] for i in range(0, 20, 2)), [])
    V += rnd(ACCB)
    V += [f"v_mul_f32 v{ACCB+i+20}, {f32(-1.4426950408889634)}, v{ACCB+i}" for i in range(20)]
    V += [f"v_exp_f32 v{ACCB+i+20}, v{ACCB+i+20}" for i in range(20)]
    V += [f"v_add_f32 v{ACCB+i+20}, 1.0, v{ACCB+i+20}" for i in range(20)]
    V += [f"v_rcp_f32 v{ACCB+i+20}, v{ACCB+i+20}" for i in range(20)]
    V += [f"v_mul_f32 v{ACCB+i}, v{ACCB+i}, v{ACCB+i+20}" for i in range(20)]
    V += rnd(ACCB)
    for i in range(10): V += [f"v_lshlrev_b32 v{ACCB+20+2*i}, 16, v{XR+i}", f"v_and_b32 v{ACCB+21+2*i}, 0xffff0000, v{XR+i}"]
    prev = chain(ops, V, g0 + 250, NG - 60, dep=(prev, 8))
    ops.append(Op(["s_barrier"], lo=NG - 50, hi=NG - 46, deps=[prev]))
    if STAMP:
        for g in (120, 204, 284, 440, 600, 760): ops.append(Op([x.text for x in stamp(22)], lo=g, hi=g + 4, glue=True))
    body, cyc = weave(mf, ops)
    S += body
    S += stamp(22)
    for tt in range(4):
        for nt in range(5):
            d = ACCS + (tt * 5 + nt) * 4
            S += lines(f"ds_write_b128 v{vWb1 if tt < 2 else vWb2}, {r4('v', d)} offset:{(tt%2)*20480 + nt*1024}")
    S += lines("s_waitcnt lgkmcnt(0)\ns_barrier")
    for nt in range(5):
        for w in range(4):
            S += lines(f"ds_read_b128 {r4('v', ACCS + (w * 5 + nt) * 4)}, v{vRd} offset:{w*5120 + nt*1024}")
    for nt in range(5):
        rr = [ACCS + nt * 4 + i for i in range(4)]
        for r in rr: S += lines(f"v_add_f32 v{r}, v{r}, v{r+20}\nv_add_f32 v{r+40}, v{r+40}, v{r+60}")
        for r in rr: S += lines(f"v_add_f32 v{r}, v{r}, v{r+40}")
        rn = "\n".join(f"v_cvt_pk_bf16_f32 v{r+20}, v{r}, v{r+1}\nv_lshlrev_b32 v{r}, 16, v{r+20}\nv_and_b32 v{r+1}, 0xffff0000, v{r+20}" for r in rr[::2])
        S += lines(rn)
        for r in rr: S += lines(f"v_mul_f32 v{r}, v{r}, v{r - ACCS + ACCB}")
        S += lines(rn)
        for r in rr: S += lines(f"v_add_f32 v{r}, v{r}, v{r - ACCS + ACCB + 20}")
        S += lines(f"v_cvt_pk_bf16_f32 v{rr[0]+20}, v{rr[0]}, v{rr[1]}\nv_cvt_pk_bf16_f32 v{rr[0]+21}, v{rr[2]}, v{rr[3]}")
        S += lines(f"buffer_store_dwordx2 v[{rr[0]+20}:{rr[0]+21}], v{vX}, s[{SOUT}:{SOUT+3}], 0 offen offset:{nt*32}")
    S += stamp(22)
    print("phase D model", cyc)
    return S

def gen():
    name = "k"
    A, atail = phase_a()
    A += lines(f"s_cmp_lt_u32 s62, 5\ns_cbranch_scc1 {name}_spare")
    check_m0(A)
    A, vmA, lgA = insert_waits(A); hz = []
    A = pad_hazards(A, hz); print("  A final", model_cycles(A), "nops", len(hz))
    def fin(X, vm=None, lg=None, before=None):
        check_m0(X)
        X, v, l = insert_waits(X, vm_init=vm, lg_init=lg); hz = []
        X = pad_hazards(X, hz, before=before); print("  final", model_cycles(X), "nops", len(hz))
        return X
    S = A
    S += fin(phase_b(True, atail) + lines(f"s_waitcnt lgkmcnt(0)\n{name}_att:"), vmA, lgA, A)
    S += lines(f"s_cmp_eq_u32 s{sI}, 0\ns_cbranch_scc1 {name}_f_d1")
    def ft(ty):
        su, gl = publish(["s_lshl_b32 s3, s2, 2", f"s_add_u32 s3, s3, {F_HW}"], vM1)
        X = C.first_tile(ty) + C.init_max() + lines("\n".join(su)) + lines("s_waitcnt vmcnt(4) lgkmcnt(0)\ns_barrier") + lines("\n".join(gl)) + stamp()
        X, _, _ = insert_waits(X)
        return pad_hazards(lines("s_nop 1") + X)
    S += ft("S")
    S += lines(f"s_mov_b32 s{sCnt}, s{sI}")
    S += C.body("S", "S", 0, "f0ss", first_pv=True)
    S += lines(f"s_branch {name}_smid\n{name}_sloop:")
    S += C.body("S", "S", 0, "b0ss")
    S += lines(f"{name}_smid:\ns_sub_u32 s{sCnt}, s{sCnt}, 1\ns_cmp_eq_u32 s{sCnt}, 0\ns_cbranch_scc1 {name}_sexit")
    S += C.body("S", "S", 1, "b1ss")
    S += lines(f"s_branch {name}_sloop\n{name}_sexit:")
    S += C.body("S", "Sd1", 1, "b1sd1")
    S += C.body("Sd1", "Sd2", 0, "b0d1d2")
    S += lines(f"s_cmp_eq_u32 s{sI}, 7\ns_cbranch_scc1 {name}_d2rd\n{name}_d2r:")
    S += C.body("Sd2", "R", 1, "b1d2r")
    S += C.finalize([0, 1], 1)
    S += lines(f"s_sub_u32 s{sCnt}, 7, s{sI}\n{name}_rloop:")
    S += C.body("R", "R", 0, "b0rr")
    S += lines(f"s_sub_u32 s{sCnt}, s{sCnt}, 1\ns_cmp_eq_u32 s{sCnt}, 0\ns_cbranch_scc1 {name}_rexit")
    S += C.body("R", "R", 1, "b1rr")
    S += lines(f"s_branch {name}_rloop\n{name}_rexit:")
    S += C.body("R", "Rd", 1, "b1rrd")
    S += lines(f"{name}_last:")
    S += fin(C.body("Rd", None, 0, "b0rd", hook=d_hook) + phase_d(), vm=[I("buffer_store_dword v0, v0, s[0:3], 0")] * 9)
    S += lines("kend:\ns_endpgm")
    S += lines(f"{name}_f_d1:")
    S += ft("Sd1")
    S += C.body("Sd1", "Sd2", 0, "f0d1d2", first_pv=True)
    S += lines(f"s_branch {name}_d2r\n{name}_d2rd:")
    S += C.body("Sd2", "Rd", 1, "b1d2rd")
    S += C.finalize([0, 1], 1)
    S += lines(f"s_branch {name}_last\n{name}_spare:")
    S += fin(phase_b(False, atail) + lines("s_waitcnt lgkmcnt(0)\ns_barrier"), vmA, lgA, A)
    S += C.transposer(name)
    inl, ool = poll_check(vT[1], vT[0]); OOL.extend(ool)
    S += fin(lines(poll_load(vT[1], vT[0]) + "\n" + "\n".join(inl)) + C.late_items() + lines(f"s_waitcnt lgkmcnt(0)\ns_branch {name}_att"),
             vm=[I("buffer_store_dword v0, v0, s[0:3], 0")] * 9)
    for fam in "SR":
        for par in range(2): S += C.rare(fam, par)
    S += pad_hazards(lines("\n".join(OOL)))
    print("total insts", len(S))
    return S
```

```python
import sys, os
sys.path.insert(0, "g")
from core import *
from layout import *
NAME = "recurrent_scan__compressed_kv_cla__glu_gated_bilinear__prompt"
def build(S, path, aslist):
    ref = open(f"cdna_kernels/{NAME}.s.ref").read().split("\n")
    out = [l for l in ref if l.startswith(";") and "@launch" not in l and "Override" not in l and "grid=ceil" not in l]
    name = NAME + "_kernel"
    if aslist: out.append(f"; @launch kernel={name} grid=(256,1,1) block=(256,1,1) lds=163840")
    else: out.append(f"; @launch grid=(256,1,1) block=(256,1,1) lds=163840")
    out.append('.amdgcn_target "amdgcn-amd-amdhsa--gfx950"')
    out.append(".macro MM d, a, b, c\n  v_mfma_f32_16x16x32_bf16 \\d, \\a, \\b, \\c\n.endm")
    out.append(".text")
    out += [f".globl {name}", ".p2align 8", f".type {name},@function", f"{name}:"]
    for i in S:
        t = i.text.split(";")[0].rstrip() if i.kind != "label" else i.text
        t = t.replace("v_mfma_f32_16x16x32_bf16", "MM")
        out.append(t if i.kind == "label" else " " + t)
    out.append(f".if (. - {name}) < 0x1c100\n.fill (0x1c100 - (. - {name})) / 4, 4, 0xBF810000\n.endif")
    out.append('.section .rodata,"a"')
    out += [".p2align 6", f".amdhsa_kernel {name}", "  .amdhsa_next_free_vgpr 512", "  .amdhsa_next_free_sgpr 102",
            "  .amdhsa_accum_offset 256", "  .amdhsa_group_segment_fixed_size 0", "  .amdhsa_kernarg_size 104",
            "  .amdhsa_user_sgpr_count 2", "  .amdhsa_user_sgpr_kernarg_segment_ptr 1",
            "  .amdhsa_system_sgpr_workgroup_id_x 1", ".end_amdhsa_kernel"]
    open(path, "w").write("\n".join(out) + "\n")
if __name__ == "__main__":
    import m
    S = m.gen()
    path = sys.argv[1] if len(sys.argv) > 1 else f"cdna_kernels/{NAME}.s"
    build(S, path, aslist=len(sys.argv) > 1)
```
